```python
import torch

def _softmax(x, axis=-1):
    return torch.softmax(x, dim=axis)

def _gelu(x):
    return torch.nn.functional.gelu(x, approximate='tanh')

def _silu(x):
    return torch.nn.functional.silu(x)

def _sigmoid(x):
    return torch.sigmoid(x)

def _layernorm(x, axis=-1, eps=1e-05):
    m = x.mean(dim=axis, keepdim=True)
    v = x.var(dim=axis, keepdim=True, unbiased=False)
    return (x - m) / torch.sqrt(v + eps)

def _scatter_add(tgt, idx, src, axis=0):
    return tgt.clone().index_add_(axis, idx, src)

def _segment_sum(src, seg, n):
    out = torch.zeros((n,) + src.shape[1:], dtype=src.dtype)
    return out.index_add_(0, seg, src)

def _pad(x, pw):
    flat = tuple((v for pair in reversed(pw) for v in pair))
    return torch.nn.functional.pad(x, flat)
kernel_name = 'concat_heads__memory_aug_recurrent_mem_tr__mha_block__prompt'

def setup_inputs():

    _w = lambda a: (lambda t: t.to(torch.bfloat16) if t.is_floating_point() else t)(torch.as_tensor(a))

    def _A_setup():
        B, S, Dm = (1, 2048, 640)
        H, Dh = (32, 128)
        M, seg = (8, 32)
        seg = min(seg, S)
        S = S // seg * seg
        return {'x': _w((lambda *s: torch.randn(*s, dtype=torch.bfloat16) * 0.05)(B, S, Dm)), 'mem0': _w((lambda *s: torch.randn(*s, dtype=torch.bfloat16) * 0.8)(B, M, Dm)), 'Wq': _w((lambda *s: torch.randn(*s, dtype=torch.bfloat16) * 1.6)(Dm, H, Dh) * Dm ** (-0.5)), 'Wk': _w((lambda *s: torch.randn(*s, dtype=torch.bfloat16) * 1.6)(Dm, H, Dh) * Dm ** (-0.5)), 'Wv': _w((lambda *s: torch.randn(*s, dtype=torch.bfloat16) * 0.8)(Dm, H, Dh) * Dm ** (-0.5)), 'Wo': _w((lambda *s: torch.randn(*s, dtype=torch.bfloat16) * 0.8)(H, Dh, Dm) * (H * Dh) ** (-0.5)), 'seg_len': seg}
    _A_in = _A_setup()

    def _B_setup():
        B, S, D, H = (1, 2048, 640, 32)
        return {'x': _w((lambda *s: torch.randn(*s, dtype=torch.bfloat16) * 0.2)(B, S, D)), 'wqkv': _w((lambda *s: torch.randn(*s, dtype=torch.bfloat16) * 0.2)(D, 3 * D)), 'wo': _w((lambda *s: torch.randn(*s, dtype=torch.bfloat16) * 0.05)(D, D))}
    _B_in = _B_setup()
    return {'A_x': _A_in['x'], 'A_mem0': _A_in['mem0'], 'A_Wq': _A_in['Wq'], 'A_Wk': _A_in['Wk'], 'A_Wv': _A_in['Wv'], 'A_Wo': _A_in['Wo'], 'A_seg_len': _A_in['seg_len'], 'B_x': _B_in['x'], 'B_wqkv': _B_in['wqkv'], 'B_wo': _B_in['wo']}

def reference(A_x, A_mem0, A_Wq, A_Wk, A_Wv, A_Wo, A_seg_len, B_x, B_wqkv, B_wo):

    def _A_ref(x, mem0, Wq, Wk, Wv, Wo, seg_len):
        B, S, Dm = x.shape
        H, Dh = (Wq.shape[1], Wq.shape[2])
        M = mem0.shape[1]
        scale = Dh ** (-0.5)
        n_seg = S // seg_len
        L = M + seg_len
        idx = torch.arange(L)
        mask = (idx[:, None] < M) | (idx[:, None] >= idx[None, :])
        mem = mem0
        outs = []
        for s in range(n_seg):
            xs = x[:, s * seg_len:(s + 1) * seg_len, :].clone()
            h = torch.concatenate([mem, xs], axis=1)
            q = torch.einsum('btd,dhe->bhte', h, Wq)
            k = torch.einsum('btd,dhe->bhte', h, Wk)
            v = torch.einsum('btd,dhe->bhte', h, Wv)
            scores = torch.einsum('bhqe,bhke->bhqk', q, k) * scale
            scores = torch.where(mask[None, None], scores, -1000000000.0)
            p = _softmax(scores, axis=-1)
            o = torch.einsum('bhqk,bhke->bhqe', p, v)
            o = torch.einsum('bhte,hed->btd', o, Wo)
            mem = o[:, :M, :].clone()
            outs.append(o[:, M:, :])
        return torch.concatenate(outs, axis=1)

    def _B_ref(x, wqkv, wo):
        B, S, D = x.shape
        H = 32
        Dh = D // H
        qkv = (lambda x, *d: x.permute(*d))((x @ wqkv).reshape(B, S, 3, H, Dh), 2, 0, 3, 1, 4)
        q, k, v = (qkv[0], qkv[1], qkv[2])
        scores = torch.einsum('bhqd,bhkd->bhqk', q, k) * Dh ** (-0.5)
        p = _softmax(scores, axis=-1)
        o = torch.einsum('bhqk,bhkd->bhqd', p, v)
        return (lambda x, *d: x.permute(*d))(o, 0, 2, 1, 3).reshape(B, S, D) @ wo
    a = _A_ref(A_x, A_mem0, A_Wq, A_Wk, A_Wv, A_Wo, A_seg_len)
    b = _B_ref(B_x, B_wqkv, B_wo)
    return torch.concatenate([a, b], axis=-1)
```

```python
import sys
from core import *
import k1
def build(kernels):
    a = Asm()
    hdr = ""
    for (name, fn, grid, block, lds) in kernels:
        hdr += f"; @launch kernel={name} grid=({grid},1,1) block=({block},1,1) lds={lds}\n"
    a('.amdgcn_target "amdgcn-amd-amdhsa--gfx950"')
    a(".text")
    for (name, fn, grid, block, lds) in kernels:
        fn(a, name)
    txt = hdr + a.text() + '.section .rodata,"a"\n'
    for (name, fn, grid, block, lds) in kernels:
        txt += ".p2align 6\n" + kernel_desc(name)
    return txt
if __name__ == "__main__":
    import gemm
    gemm.STAMP = len(sys.argv) > 1
    t = build([("k1_kernel", k1.k1_kernel, 480, 256, 163840)])
    open("k1.s", "w").write(t)
    print(len(t))
```

```python
from core import *
import struct
def f2u(x): return struct.unpack("<I", struct.pack("<f", x))[0]
CA = (128 ** -0.5) * 1.4426950408889634

L_WO = 0
L_MEM = 81920
L_XQ = 92160
L_O = 94464
L_PT = 96896
L_PM = 97920
L_TOK = 98304
L_STG = 81920
XST = 288
R_RS = WS_RING
R_AG = WS_RING + 2 * MiB
R_KX = WS_RING + 3 * MiB
IDX, AGV, LA, XW, XR, KT, VT, OW, OR_, KXW, KXR, RSG, RS1, RSR, AGW, VMW, WOR, LN16 = range(2, 20)
SEL = 20
SEL2 = 24
PB = 26
A0 = 30
KACC, QA0, QA1, VA0, VA1 = 70, 74, 78, 82, 86
KOP = 90
TMP = 106
OST = 304
def Areg(k): return A0 + 4 * k
def wq(t, k): return ar((t * 10 + k) * 8, 8)
def wk(k): return ar(160 + 8 * k, 8)
def wv(t, k):
    if t == 0:
        return ar(240 + 8 * k, 8) if k < 2 else vr(112 + 8 * (k - 2), 8)
    return vr(176 + 8 * k, 8)
def wreg_base(kind, t, k):
    if kind == "q": return ("a", (t * 10 + k) * 8)
    if kind == "k": return ("a", 160 + 8 * k)
    if t == 0: return ("a", 240 + 8 * k) if k < 2 else ("v", 112 + 8 * (k - 2))
    return ("v", 176 + 8 * k)
def rr(f, b, n): return f"{f}[{b}:{b+n-1}]"

S_W, S_X, S_R, S_H, S_C = 4, 5, 6, 7, 3
S_STEP = 16
S_RSL, S_RSRM, S_RDL, S_RDR, S_AGW, S_AG1, S_AG2, S_KX, S_TOK, S_KM, S_KXZ, S_ZL, S_ZR, S_TDST = range(17, 31)
S_SC2 = 86
S_AGRW, S_ZL4, S_KMW = 90, 91, 59
S_FB, S_LPM = 52, 53
S_AGZ, S_AGRZ, S_SIG, S_DLT = 22, 23, 29, 20
S_PAR, S_SC, S_RB = 34, 35, 33
M_C8 = 36
M_L16 = 38
M_RSR = 40
M_AGW = 42
M_HI = 92
M_ODD = 56
M_L16 = 94
M_KU = 88
POLL_MAX = 40000
SLEEP_RS = 6
SLEEP_AG = 3
STAMPS = False
KOPAT = 10
TOKPOS = 0
TOKV = (14, 17)
TOKS = (2, 6)
NOTOK = False
RZPOS = 0
KOPJ = 1
KV = 9
TOKP = (6, 5)
SAFE_T = 24.0
TALIGN = 0
PADS = {}
LOOPALIGN = 0
LOOPPAD = 0
STAGGER = True
PAIRLAG = 0
AGRZPOS = 2
SLEEP_W23 = 14
SPLIT_AG = True
PUBSLEEP = 0
TOKFL = 'sc1'

def smf(acc, A, W): return f"v_smfmac_f32_16x16x64_bf16 {vr(acc,4)}, {vr(A,4)}, {W}, v{IDX}"

def weave(a, M, F, per=2, start=0):
    F = list(F)
    for i, m in enumerate(M):
        a(m)
        if i >= start:
            for _ in range(per):
                if F: a(F.pop(0))
    return F


def setup_regs(a):
    a("v_and_b32 v1, 63, v0")
    a("v_and_b32 v30, 15, v1")
    a("v_lshrrev_b32 v31, 4, v1")
    a("v_and_b32 v32, 7, v1")
    a("v_bfe_u32 v33, v1, 1, 1")
    a("v_lshrrev_b32 v38, 2, v30")
    a("v_and_b32 v39, 1, v1")
    a("v_lshl_add_u32 v38, v38, 1, v39")
    a("v_mov_b32 v34, 0x4444")
    a("v_mov_b32 v35, 0xeeee")
    a("v_cmp_eq_u32 vcc, 1, v33")
    a("s_nop 1")
    a(f"v_cndmask_b32 v{IDX}, v34, v35, vcc")
    a(f"v_cmp_gt_u32 s[{M_C8}:{M_C8+1}], 8, v30")
    a(f"v_cmp_eq_u32 s[{M_KU}:{M_KU+1}], 0, v33")
    a(f"v_cmp_gt_u32 s[{M_L16}:{M_L16+1}], 16, v1")
    a(f"v_lshlrev_b32 v{LN16}, 4, v1")
    a("v_lshl_add_u32 v34, v31, 1, v33")
    a("v_lshlrev_b32 v34, 7, v34")
    a("v_lshl_add_u32 v34, v38, 4, v34")
    a(f"v_add_u32 v{LA}, {L_MEM}, v34")
    a(f"v_mul_u32_u24 v34, {2*XST}, v31")
    a("v_bfe_u32 v35, v30, 2, 1")
    a("v_lshlrev_b32 v35, 3, v35")
    a("v_lshrrev_b32 v36, 3, v30")
    a("v_lshl_add_u32 v35, v36, 2, v35")
    a("v_and_b32 v36, 3, v30")
    a("v_add_u32 v35, v35, v36")
    a(f"s_lshl_b32 s44, s{S_W}, 5")
    a("v_add_u32 v35, s44, v35")
    a("v_lshl_add_u32 v34, v35, 1, v34")
    a(f"v_add_u32 v{XW}, {L_XQ}, v34")
    a(f"v_mul_u32_u24 v34, {XST}, v32")
    a("v_lshl_add_u32 v34, v31, 4, v34")
    a(f"v_add_u32 v{XR}, {L_XQ}, v34")
    a("v_lshrrev_b32 v34, 3, v30")
    a("v_lshlrev_b32 v34, 4, v34")
    a("v_bfe_u32 v35, v30, 2, 1")
    a("v_lshl_add_u32 v34, v35, 2, v34")
    a("v_and_b32 v35, 3, v30")
    a("v_add_u32 v34, v34, v35")
    a("v_and_b32 v35, 1, v31")
    a("v_lshl_add_u32 v34, v35, 5, v34")
    a("v_lshlrev_b32 v34, 4, v34")
    a("v_lshrrev_b32 v35, 1, v31")
    a("v_lshl_add_u32 v34, v35, 10, v34")
    a(f"v_add_u32 v{KT}, {L_TOK}, v34")
    a("v_and_b32 v34, 1, v31")
    a("v_lshl_add_u32 v34, v34, 5, v30")
    a("v_lshlrev_b32 v34, 4, v34")
    a("v_lshl_add_u32 v34, v35, 10, v34")
    a(f"s_lshl_b32 s44, s{S_W}, 11")
    a(f"s_add_u32 s44, s44, {L_TOK + 8192}")
    a(f"v_add_u32 v{VT}, s44, v34")
    a(f"v_mul_u32_u24 v34, {OST}, v32")
    a("v_lshl_add_u32 v35, v31, 3, v34")
    a(f"s_lshl_b32 s44, s{S_W}, 6")
    a(f"s_add_u32 s44, s44, {L_O}")
    a(f"v_add_u32 v{OW}, s44, v35")
    a(f"v_mul_u32_u24 v34, {OST}, v38")
    a("v_lshl_add_u32 v35, v31, 1, v33")
    a("v_lshl_add_u32 v35, v35, 4, v34")
    a(f"v_add_u32 v{OR_}, {L_O}, v35")
    a(f"s_lshr_b32 s44, s{S_W}, 1")
    a(f"s_lshl_b32 s45, s{S_C}, 1")
    a("s_add_u32 s44, s44, s45")
    a("s_lshl_b32 s44, s44, 9")
    a(f"s_and_b32 s45, s{S_W}, 1")
    a("s_lshl_b32 s45, s45, 8")
    a("s_add_u32 s44, s44, s45")
    a("v_and_b32 v34, 1, v31")
    a("v_lshlrev_b32 v34, 7, v34")
    a("v_lshrrev_b32 v35, 1, v31")
    a("v_lshl_add_u32 v34, v35, 3, v34")
    a("v_lshl_add_u32 v34, v32, 4, v34")
    a(f"v_add_u32 v{KXW}, s44, v34")
    a("v_lshlrev_b32 v35, 7, v31")
    a("v_lshl_add_u32 v35, v33, 9, v35")
    a(f"v_lshl_add_u32 v{KXR}, v38, 4, v35")
    def rsoff(dst, colreg):
        a("s_mov_b32 s44, 0xCCCCCCCD")
        a(f"v_mul_hi_u32 v36, v{colreg}, s44")
        a("v_lshrrev_b32 v36, 4, v36")
        a("v_mul_u32_u24 v37, 20, v36")
        a(f"v_sub_u32 v37, v{colreg}, v37")
        a(f"s_lshl_b32 s45, s{S_C}, 4")
        a("v_add_u32 v36, s45, v36")
        a("v_lshlrev_b32 v36, 14, v36")
        a(f"v_lshl_add_u32 v{dst}, v37, 4, v36")
    a("v_lshl_add_u32 v34, v31, 4, v30")
    a(f"s_mul_i32 s44, s{S_W}, 80")
    a("v_add_u32 v34, s44, v34")
    rsoff(RSG, 34)
    a(f"s_mul_i32 s44, s{S_W}, 80")
    a("s_add_u32 s44, s44, 64")
    a("v_add_u32 v34, s44, v30")
    rsoff(RS1, 34)
    a("v_mul_u32_u24 v34, 320, v31")
    a("v_lshl_add_u32 v34, v30, 4, v34")
    a(f"s_and_b32 s44, s{S_W}, 1")
    a("s_lshl_b32 s44, s44, 8")
    a(f"v_add_u32 v{RSR}, s44, v34")
    a(f"s_and_b32 s44, s{S_W}, 1")
    a("s_cmp_eq_u32 s44, 0")
    a("s_cselect_b32 s44, 16, 4")
    a(f"v_cmp_gt_u32 s[{M_RSR}:{M_RSR+1}], s44, v30")
    a(f"s_mul_i32 s44, s{S_R}, 20")
    a(f"s_and_b32 s45, s{S_W}, 1")
    a("s_lshl_b32 s46, s45, 4")
    a("s_add_u32 s44, s44, s46")
    a("v_add_u32 v34, s44, v30")
    a("v_lshlrev_b32 v34, 4, v34")
    a("v_and_b32 v35, 1, v31")
    a(f"v_lshl_add_u32 v{AGW}, v35, 3, v34")
    a("s_cmp_eq_u32 s45, 0")
    a("s_cselect_b32 s46, 16, 4")
    a(f"v_cmp_gt_u32 vcc, s46, v30")
    a(f"v_cmp_gt_u32 s[46:47], 32, v1")
    a("s_nop 3")
    a(f"s_and_b64 s[{M_AGW}:{M_AGW+1}], vcc, s[46:47]")
    a(f"s_mov_b32 s{M_HI}, 0")
    a(f"s_mov_b32 s{M_HI+1}, -1")
    a(f"s_lshl_b32 s44, s{S_W}, 5")
    a("v_add_u32 v34, s44, v30")
    a("v_lshlrev_b32 v34, 2, v34")
    a(f"v_lshl_add_u32 v{VMW}, v31, 9, v34")
    a(f"s_mul_i32 s44, s{S_W}, 20480")
    a(f"v_add_u32 v{WOR}, s44, v{LN16}")
    for m in range(4):
        a(f"v_mov_b32 v{SEL+m}, 0")
        a(f"v_mov_b32 v34, 0x3f80")
        a(f"v_cmp_eq_u32 vcc, {2*m}, v30")
        a("s_nop 1")
        a(f"v_cndmask_b32 v{SEL+m}, v{SEL+m}, v34, vcc")
        a(f"v_mov_b32 v34, 0x3f800000")
        a(f"v_cmp_eq_u32 vcc, {2*m+1}, v30")
        a("s_nop 1")
        a(f"v_cndmask_b32 v{SEL+m}, v{SEL+m}, v34, vcc")
    a("v_lshlrev_b32 v35, 1, v31")
    a(f"v_mov_b32 v{SEL2}, 0")
    for half, cst in ((0, "0x3f80"), (1, "0x3f800000")):
        a(f"v_add_u32 v36, {half}, v35")
        a(f"v_mov_b32 v34, {cst}")
        a("v_cmp_eq_u32 vcc, v36, v32")
        a("s_nop 1")
        a(f"v_cndmask_b32 v{SEL2}, v{SEL2}, v34, vcc")
    a(f"v_mov_b32 v{SEL2+1}, 0")
    a(f"v_mov_b32 v{PB+1}, 0")
    a(f"v_mov_b32 v{PB+2}, 0")
    a(f"s_mov_b32 s{S_SC}, {hex(f2u(CA))}")

def load_weights(a):
    def dperm(dst, kreg):
        a(f"v_and_b32 {dst}, 0x30, {kreg}")
        a(f"v_bfe_u32 v60, {kreg}, 1, 1")
        a(f"v_lshl_add_u32 {dst}, v60, 3, {dst}")
        a(f"v_bfe_u32 v60, {kreg}, 2, 2")
        a(f"v_lshl_add_u32 {dst}, v60, 1, {dst}")
        a(f"v_and_b32 v60, 1, {kreg}")
        a(f"v_add_u32 {dst}, {dst}, v60")
    for u in range(4):
        a("v_lshrrev_b32 v40, 4, v1")
        a(f"s_lshl_b32 s44, s{S_W}, 4")
        a(f"s_add_u32 s44, s44, {4*u}")
        a("v_add_u32 v41, s44, v40")
        dperm("v42", "v41")
        a("v_lshlrev_b32 v42, 13, v42")
        a(f"v_lshlrev_b32 v43, 1, v40")
        a(f"v_or_b32 v43, {8*(u>>1)}, v43")
        a("v_and_b32 v44, 15, v1")
        a("v_xor_b32 v44, v44, v43")
        a(f"v_lshl_add_u32 v{66+u}, v44, 4, v42")
    for u in range(2):
        a("v_lshrrev_b32 v40, 3, v1")
        a(f"s_lshl_b32 s44, s{S_W}, 4")
        a(f"s_add_u32 s44, s44, {8*u}")
        a("v_add_u32 v41, s44, v40")
        dperm("v42", "v41")
        a("v_lshlrev_b32 v42, 13, v42")
        a("v_bfe_u32 v43, v41, 1, 1")
        a(f"v_or_b32 v43, {2*u}, v43")
        a("v_lshlrev_b32 v43, 1, v43")
        a("v_and_b32 v44, 7, v1")
        a("v_xor_b32 v44, v44, v43")
        a(f"v_lshl_add_u32 v{70+u}, v44, 4, v42")
    for u in range(10):
        a(f"v_add_u32 v40, {64*u}, v1")
        a("s_mov_b32 s44, 0xCCCCCCCD")
        a("v_mul_hi_u32 v41, v40, s44")
        a("v_lshrrev_b32 v41, 5, v41")
        a("v_mul_u32_u24 v44, 40, v41")
        a("v_sub_u32 v44, v40, v44")
        a(f"s_lshl_b32 s44, s{S_W}, 4")
        a("v_add_u32 v41, s44, v41")
        dperm("v42", "v41")
        a("v_mul_u32_u24 v42, 1280, v42")
        a("v_bfe_u32 v43, v41, 1, 1")
        a("v_bfe_u32 v45, v41, 3, 1")
        a("v_lshl_add_u32 v43, v45, 1, v43")
        a("v_lshlrev_b32 v43, 1, v43")
        a("v_xor_b32 v44, v44, v43")
        a(f"v_lshl_add_u32 v{72+u}, v44, 4, v42")
    a("v_lshrrev_b32 v40, 4, v1")
    a("v_bfe_u32 v41, v1, 2, 2")
    a("v_and_b32 v42, 3, v1")
    a("v_lshl_add_u32 v43, v40, 3, v41")
    a("v_lshrrev_b32 v44, 1, v42")
    a("v_and_b32 v45, 1, v42")
    a("v_lshlrev_b32 v45, 3, v45")
    a("v_and_b32 v46, 1, v40")
    a("v_lshl_add_u32 v46, v46, 2, v41")
    a("v_lshlrev_b32 v46, 1, v46")
    for t in range(2):
        a(f"s_lshl_b32 s44, s{S_W}, 2")
        a(f"s_add_u32 s44, s44, {2*t}")
        a("v_add_u32 v47, s44, v44")
        a("v_xor_b32 v47, v47, v46")
        a("v_lshlrev_b32 v47, 4, v47")
        a("v_lshl_add_u32 v47, v43, 8, v47")
        a(f"v_add_u32 v{82+t}, v47, v45")
    a("v_bfe_u32 v46, v41, 1, 1")
    a("v_and_b32 v47, 1, v40")
    a("v_lshl_add_u32 v46, v47, 1, v46")
    a("v_lshlrev_b32 v46, 1, v46")
    a(f"s_lshl_b32 s44, s{S_W}, 1")
    a("v_add_u32 v47, s44, v44")
    a("v_xor_b32 v47, v47, v46")
    a("v_lshlrev_b32 v47, 4, v47")
    a("v_lshl_add_u32 v47, v43, 7, v47")
    a("v_add_u32 v84, v47, v45")
    for tau in range(5):
        a(f"s_mul_i32 s44, s{S_W}, 10")
        a(f"s_add_u32 s44, s44, {2*tau}")
        a("v_add_u32 v47, s44, v44")
        a("v_xor_b32 v47, v47, v46")
        a("v_lshlrev_b32 v47, 4, v47")
        a("v_mul_u32_u24 v48, 640, v43")
        a("v_add3_u32 v47, v47, v48, v45")
        a(f"v_add_u32 v{85+tau}, {L_STG}, v47")
    for t in range(2):
        a(f"v_add_u32 v{82+t}, {L_STG}, v{82+t}")
    a(f"v_add_u32 v84, {L_STG + 32768}, v84")
    for t in range(2):
        a(f"v_add_u32 v{90+t}, 16384, v{82+t}")
    a(f"s_load_dwordx2 s[44:45], s[0:1], {KA['wq']}")
    a(f"s_load_dwordx2 s[46:47], s[0:1], {KA['wk']}")
    a(f"s_load_dwordx2 s[48:49], s[0:1], {KA['wv']}")
    a("s_waitcnt lgkmcnt(0)")
    for d, base in ((12, 44), (52, 46), (56, 48)):
        a(f"s_mov_b32 s{d}, s{base}")
        a(f"s_mov_b32 s{d+1}, s{base+1}")
        a(f"s_mov_b32 s{d+2}, {640*8192}")
        a(f"s_mov_b32 s{d+3}, {hex(SRD3)}")
    a(f"s_lshl_b32 s46, s{S_H}, 8")
    a(f"s_lshl_b32 s47, s{S_C}, 7")
    a("s_add_u32 s47, s47, s46")
    a(f"s_lshl_b32 s48, s{S_W}, 12")
    a(f"s_lshl_b32 s49, s{S_W}, 11")
    def dma(kap):
        b = (kap % 4) * 40960
        a(f"s_add_u32 s50, s46, {kap*64*8192}")
        a(f"s_add_u32 s51, s47, {kap*64*8192}")
        for u in range(4):
            a(f"s_add_u32 m0, s48, {b + u*1024}")
            a("s_nop 0")
            a(f"buffer_load_dwordx4 v{66+u}, s[12:15], s50 offen lds")
        for u in range(4):
            a(f"s_add_u32 m0, s48, {b + 16384 + u*1024}")
            a("s_nop 0")
            a(f"buffer_load_dwordx4 v{66+u}, s[56:59], s50 offen lds")
        for u in range(2):
            a(f"s_add_u32 m0, s49, {b + 32768 + u*1024}")
            a("s_nop 0")
            a(f"buffer_load_dwordx4 v{70+u}, s[52:55], s51 offen lds")
    if PAIRLAG:
        zl = a.uid("PL")
        a(f"s_cmp_eq_u32 s{S_C}, 0")
        a(f"s_cbranch_scc1 {zl}")
        a(f"s_sleep {PAIRLAG}")
        a.lab(zl)
    a(f"s_load_dwordx2 s[64:65], s[0:1], {KA['mem0']}")
    a(f"s_load_dwordx2 s[76:77], s[0:1], {KA['wo']}")
    a("s_waitcnt lgkmcnt(0)")
    a("s_mov_b32 s66, 10240"); a(f"s_mov_b32 s67, {hex(SRD3)}")
    a(f"s_mov_b32 s78, {32*128*1280}"); a(f"s_mov_b32 s79, {hex(SRD3)}")
    zm = a.uid("M0")
    a(f"s_cmp_ge_u32 s{S_W}, 2")
    a(f"s_cbranch_scc1 {zm}")
    for u in range(5):
        a(f"v_add_u32 v40, {128*u}, v0")
        a("v_and_b32 v41, 7, v40")
        a("v_lshrrev_b32 v42, 3, v40")
        a("v_mul_u32_u24 v41, 1280, v41")
        a("v_lshl_add_u32 v41, v42, 4, v41")
        a(f"buffer_load_dwordx4 {vr(92+4*u,4)}, v41, s[64:67], 0 offen")
    a.lab(zm)
    for r in (82, 83, 84, 90, 91): a(f"v_subrev_u32 v{r}, {L_STG}, v{r}")
    def qkv_loop(order):
        def dma2(pos):
            kap = order[pos]
            b = (pos % 4) * 40960
            a(f"s_add_u32 s50, s46, {kap*64*8192}")
            a(f"s_add_u32 s51, s47, {kap*64*8192}")
            for u in range(4):
                a(f"s_add_u32 m0, s48, {b + u*1024}")
                a("s_nop 0")
                a(f"buffer_load_dwordx4 v{66+u}, s[12:15], s50 offen lds")
            for u in range(4):
                a(f"s_add_u32 m0, s48, {b + 16384 + u*1024}")
                a("s_nop 0")
                a(f"buffer_load_dwordx4 v{66+u}, s[56:59], s50 offen lds")
            for u in range(2):
                a(f"s_add_u32 m0, s49, {b + 32768 + u*1024}")
                a("s_nop 0")
                a(f"buffer_load_dwordx4 v{70+u}, s[52:55], s51 offen lds")
        dma2(0); dma2(1); dma2(2)
        for pos in range(10):
            kap = order[pos]
            left = min(9 - pos, 2)
            a(f"s_waitcnt vmcnt({10*left + (20 if pos >= 7 else 0)})")
            a("s_barrier")
            if pos == 0:
                zr = a.uid("RD")
                a(f"s_cmp_lg_u32 s{S_W}, 0")
                a(f"s_cbranch_scc1 {zr}")
                a("v_mov_b32 v40, 64")
                a("v_mov_b32 v41, 1")
                a("v_cmp_eq_u32 vcc, 0, v1")
                a("s_and_saveexec_b64 s[62:63], vcc")
                a("global_atomic_add v40, v41, s[60:61]")
                a("s_mov_b64 exec, -1")
                a.lab(zr)
            for kind in ("q", "v", "k"):
                for t in range(2 if kind != "k" else 1):
                    f, b = wreg_base(kind, t, kap)
                    for half in range(2):
                        for u in range(2):
                            if kind == "k":
                                a(f"ds_read_b64_tr_b16 {rr(f,b+4*half+2*u,2)}, v84 offset:{(32*half+4*u)*128}")
                            else:
                                a(f"ds_read_b64_tr_b16 {rr(f,b+4*half+2*u,2)}, v{(82 if kind == 'q' else 90)+t} offset:{(32*half+4*u)*256}")
            if pos + 3 < 10:
                dma2(pos + 3)
            if pos == 6:
                a(f"s_mul_i32 s80, s{S_H}, {128*1280}")
                a(f"s_mul_i32 s81, s{S_C}, 640")
                a("s_add_u32 s80, s80, s81")
                for kp in range(2):
                    for u in range(10):
                        a(f"buffer_load_dwordx4 v[44:47], v{72+u}, s[76:79], s80 offen")
                    a(f"s_add_u32 s80, s80, {64*1280}")
            step_ = 40960 if pos % 4 != 3 else -3 * 40960
            a("s_waitcnt lgkmcnt(0)")
            for r in (82, 83, 84, 90, 91):
                a(f"v_add_u32 v{r}, {step_ & 0xffffffff}, v{r}")
    if STAGGER:
        zq = a.uid("QL")
        a(f"s_cmp_eq_u32 s{S_C}, 0")
        a(f"s_cbranch_scc0 {zq}_1")
        qkv_loop([0, 1, 2, 3, 4, 5, 6, 7, 8, 9])
        a(f"s_branch {zq}_2")
        a.lab(f"{zq}_1")
        qkv_loop([3, 4, 5, 0, 1, 2, 9, 8, 6, 7])
        a.lab(f"{zq}_2")
    else:
        qkv_loop([0, 1, 2, 3, 4, 5, 6, 7, 8, 9])
    a("s_barrier")
    a(f"s_load_dwordx2 s[12:13], s[0:1], {KA['wo']}")
    a("s_waitcnt lgkmcnt(0)")
    a(f"s_mov_b32 s14, {32*128*1280}")
    a(f"s_mov_b32 s15, {hex(SRD3)}")
    a(f"s_mul_i32 s46, s{S_H}, {128*1280}")
    a(f"s_mul_i32 s47, s{S_C}, 640")
    a("s_add_u32 s46, s46, s47")
    a(f"s_mul_i32 s48, s{S_W}, 10240")
    for kap in range(2):
        for u in range(10):
            a(f"s_add_u32 m0, s48, {L_STG + kap*40960 + u*1024}")
            a(f"s_add_u32 s47, s46, {kap*64*1280}")
            a(f"buffer_load_dwordx4 v{72+u}, s[12:15], s47 offen lds")
    for kap in range(2):
        a(f"s_waitcnt vmcnt({10*(1-kap)})")
        a("s_barrier")
        for tau in range(5):
            for half in range(2):
                for u in range(2):
                    a(f"ds_read_b64_tr_b16 {vr(44+4*half+2*u,2)}, v{85+tau} offset:{kap*40960 + (32*half+4*u)*640}")
            a("s_waitcnt lgkmcnt(0)")
            for half in range(2):
                a(f"ds_write_b128 v{WOR}, {vr(44+4*half,4)} offset:{(tau*2+kap)*2048 + half*1024}")
    a("s_waitcnt lgkmcnt(0)")
    a("s_barrier")

def init_offsets(a):
    a(f"s_lshl_b32 s47, s{S_X}, 19")
    a(f"s_add_u32 s47, s47, s{S_RB}")
    a(f"s_and_b32 s48, s{S_H}, 15")
    a("s_mul_i32 s48, s48, 320")
    a(f"s_sub_u32 s49, 8192, s{S_PAR}")
    a(f"s_add_u32 s{S_RSL}, s47, s48")
    a(f"s_add_u32 s{S_RSL}, s{S_RSL}, s49")
    a(f"s_lshl_b32 s50, s{S_R}, 14")
    a("s_add_u32 s50, s50, s47")
    a(f"s_add_u32 s{S_RDL}, s50, s49")
    a(f"s_lshr_b32 s48, s{S_R}, 4")
    a(f"s_mul_i32 s49, s48, {16384 - 5120}")
    a(f"s_add_u32 s49, s49, s{S_PAR}")
    a(f"s_add_u32 s{S_AGW}, s47, s49")
    a(f"s_add_u32 s{S_AGW}, s{S_AGW}, {2*16384}")
    a(f"s_lshl_b32 s50, s{S_X}, 19")
    a(f"s_xor_b32 s50, s50, 0x80000")
    a(f"s_add_u32 s50, s50, s{S_RB}")
    a(f"s_add_u32 s{S_AGRW}, s50, s49")
    a(f"s_add_u32 s{S_AGZ}, s{S_AGW}, 65536")
    a(f"s_add_u32 s{S_AGRZ}, s{S_AGRW}, 65536")
    a(f"s_mov_b32 s{S_SIG}, 0")
    a(f"s_lshr_b32 s48, s{S_W}, 1")
    a(f"s_mul_i32 s49, s48, {16384 - 5120}")
    a(f"s_add_u32 s49, s49, s{S_PAR}")
    a("s_add_u32 s49, s49, s47")
    a(f"s_mul_i32 s48, s{S_W}, {160*16}")
    a("s_add_u32 s49, s49, s48")
    a("v_and_b32 v40, 15, v1")
    a("v_lshrrev_b32 v41, 5, v1")
    a("v_lshl_add_u32 v40, v41, 4, v40")
    a("v_lshlrev_b32 v40, 4, v40")
    a("v_bfe_u32 v41, v1, 4, 1")
    a("v_xor_b32 v41, 1, v41")
    a("v_lshl_add_u32 v40, v41, 15, v40")
    a(f"v_add_u32 v{AGV}, s49, v40")
    a(f"s_lshl_b32 s47, s{S_H}, 11")
    a(f"s_add_u32 s47, s47, s{S_RB}")
    a(f"s_add_u32 s{S_KX}, s47, {3*MiB}")
    a(f"s_add_u32 s{S_KXZ}, s{S_KX}, 0x10000")
    a(f"s_add_u32 s47, s{S_H}, 32")
    a(f"s_lshl_b32 s47, s47, 13")
    a(f"s_lshr_b32 s48, s{S_W}, 1")
    a(f"s_lshl_b32 s48, s48, 24")
    a(f"s_add_u32 s47, s47, s48")
    a(f"s_and_b32 s48, s{S_W}, 1")
    a(f"s_lshl_b32 s48, s48, 12")
    a(f"s_add_u32 s47, s47, s48")
    a(f"s_add_u32 s{S_TOK}, s47, {WS_KF}")
    a(f"s_lshl_b32 s47, s{S_W}, 12")
    a(f"s_add_u32 s{S_TDST}, s47, {L_TOK + 16384}")
    a(f"s_lshl_b32 s47, s{S_W}, 10")
    a(f"s_add_u32 s{S_ZL}, s{S_RDL}, s47")
    a(f"s_add_u32 s{S_ZL}, s{S_ZL}, 0x100000")
    a(f"s_lshl_b32 s47, s{S_W}, 8")
    a(f"s_add_u32 s47, s47, {0x100000 + 4096}")
    a(f"s_add_u32 s{S_ZL4}, s{S_RDL}, s47")
    a(f"s_lshl_b32 s{S_KMW}, s{S_C}, 2")
    a(f"s_add_u32 s{S_KMW}, s{S_KMW}, s{S_W}")
    a(f"s_mov_b32 s{S_SC2}, s{S_SC}")
    a(f"s_mov_b32 s{S_SC2+1}, s{S_SC}")
    a(f"s_lshl_b32 s{S_KM}, s{S_H}, 11")

def toggle_offsets():
    L = []
    L.append(f"s_bitcmp1_b32 s{S_STEP}, 0")
    L.append("s_cselect_b32 s44, -1, 1")
    L.append(f"s_lshl_b32 s45, s44, 20")
    for r in (S_RSL, S_RDL): L.append(f"s_add_u32 s{r}, s{r}, s45")
    for r in (S_ZL, S_ZL4): L.append(f"s_sub_u32 s{r}, s{r}, s45")
    L.append(f"s_sub_u32 s{S_DLT}, s{S_AGZ}, s{S_AGW}")
    L.append(f"v_add_u32 v{AGV}, s{S_DLT}, v{AGV}")
    L.append(f"s_mov_b32 s{S_AGW}, s{S_AGZ}")
    L.append(f"s_mov_b32 s{S_AGRW}, s{S_AGRZ}")
    L.append(f"s_add_u32 s{S_SIG}, s{S_SIG}, 1")
    L.append(f"s_cmp_eq_u32 s{S_SIG}, 3")
    L.append(f"s_cselect_b32 s{S_SIG}, 0, s{S_SIG}")
    L.append(f"s_cmp_eq_u32 s{S_SIG}, 2")
    L.append(f"s_mov_b32 s{S_DLT}, 65536")
    L.append(f"s_cselect_b32 s{S_DLT}, {(-131072) & 0xffffffff}, s{S_DLT}")
    L.append(f"s_add_u32 s{S_AGZ}, s{S_AGW}, s{S_DLT}")
    L.append(f"s_add_u32 s{S_AGRZ}, s{S_AGRW}, s{S_DLT}")
    L.append(f"s_xor_b32 s{S_TDST}, s{S_TDST}, 16384")
    L.append(f"s_lshl_b32 s45, s44, 16")
    L.append(f"s_mov_b32 s{S_KXZ}, s{S_KX}")
    L.append(f"s_add_u32 s{S_KX}, s{S_KX}, s45")
    L.append(f"s_add_u32 s{S_KM}, s{S_KM}, 65536")
    L.append(f"s_add_u32 s{S_TOK}, s{S_TOK}, {32*8192}")
    L.append(f"s_add_u32 s{S_STEP}, s{S_STEP}, 1")
    return L

def token_dma(src, dst):
    L = [f"s_mov_b32 m0, {dst}", "s_nop 0"]
    L += [f"buffer_load_dwordx4 v{LN16}, s[8:11], {src} offen offset:{u*1024} {TOKFL} lds" for u in range(4)]
    if NOTOK: L = L[:2] + ["s_nop 0"] * 4
    return L

def poll_counter(a, lab_fail):
    a("s_add_u32 s31, s31, 1")
    a(f"s_cmp_gt_u32 s31, {POLL_MAX}")
    a(f"s_cbranch_scc1 {lab_fail}")

def maxtree(a, dst, regs):
    regs = list(regs)
    a(f"v_max3_u32 v{dst}, v{regs[0]}, v{regs[1]}, v{regs[2]}")
    i = 3
    while i < len(regs):
        if i + 1 < len(regs):
            a(f"v_max3_u32 v{dst}, v{dst}, v{regs[i]}, v{regs[i+1]}"); i += 2
        else:
            a(f"v_max_u32 v{dst}, v{dst}, v{regs[i]}"); i += 1

def fold(D, dst):
    return [f"v_pk_add_f32 {vr(D,2)}, {vr(D,2)}, {vr(D+2,2)}", f"v_cvt_pk_bf16_f32 v{dst}, v{D}, v{D+1}"]
def zero(a, base, n):
    for r in range(base, base + n, 2): a(f"v_mov_b64 {vr(r,2)}, 0")

def step(a, last=False, stampfn=None, loop=None):
    n = a.uid("ST")
    st0 = stampfn or (lambda i: None)
    st = (lambda i: st0(i) if (STAMP_FINE not in (2, 3) or i in (0, 10) or (STAMP_FINE == 3 and i in (4, 5))) else None)
    ks = (lambda i: st0(i) if STAMP_FINE == 3 else None)
    cs = (lambda i: st0(i) if STAMP_FINE == 2 else None)
    T = TMP + 2
    VP = TMP
    if loop:
        if LOOPALIGN:
            a(f".p2align {LOOPALIGN}")
            for _ in range(LOOPPAD): a("s_nop 0")
        a.lab(loop)
    a("s_waitcnt lgkmcnt(0)")
    a("s_barrier")
    st(0)
    for k in range(10):
        a(f"ds_read_b128 {vr(Areg(k),4)}, v{LA} offset:{k*1024}")
    Z = KOP
    me = "s_mov_b64 exec, -1"
    m16 = f"s_mov_b64 exec, s[{M_L16}:{M_L16+1}]"
    if not last and RZPOS >= 2:
        a(f"buffer_store_dwordx4 {vr(Z,4)}, v{LN16}, s[8:11], s{S_ZL} offen")
        a(m16); a(f"buffer_store_dwordx4 {vr(Z,4)}, v{LN16}, s[8:11], s{S_ZL4} offen"); a(me)
    if not last and RZPOS == 3:
        a(f"s_mov_b64 exec, s[{M_C8}:{M_C8+1}]"); a(f"buffer_store_dwordx2 {vr(Z,2)}, v{KXW}, s[8:11], s{S_KXZ} offen")
        a(f"s_mov_b64 exec, s[{M_AGW}:{M_AGW+1}]"); a(f"buffer_store_dwordx2 {vr(Z,2)}, v{AGW}, s[8:11], s{S_AGZ} offen"); a(me)
    tok = token_dma(f"s{S_TOK}", f"s{S_TDST}")
    if not last: a(tok[0])
    for k in range(10):
        a(f"s_waitcnt lgkmcnt({9-k})")
        a(smf(KACC, Areg(k), wk(k)))
        if not last and k == TOKP[0]: a(tok[2])
        if not last and k == AGRZPOS:
            a(f"s_mov_b64 exec, s[{M_AGW}:{M_AGW+1}]"); a(f"buffer_store_dwordx2 {vr(Z,2)}, v{AGW}, s[8:11], s{S_AGRZ} offen sc1"); a(me)
    st(1)
    for _ in range(PADS.get(1, 0)): a("s_nop 0")
    ktail = [f"v_pk_add_f32 {vr(KACC,2)}, {vr(KACC,2)}, {vr(KACC+2,2)}",
             f"v_cvt_pk_bf16_f32 v{T}, v{KACC}, v{KACC+1}", f"v_cvt_pk_bf16_f32 v{T+1}, v{KACC}, v{KACC+1}"]
    ktm = f"v_mfma_f32_16x16x16_bf16 {vr(KACC,4)}, {vr(T,2)}, {vr(SEL2,2)}, 0"
    kt2 = [f"v_cvt_pk_bf16_f32 v{T}, v{KACC}, v{KACC+1}", f"v_cvt_pk_bf16_f32 v{T+1}, v{KACC+2}, v{KACC+3}",
           f"s_mov_b64 exec, s[{M_C8}:{M_C8+1}]",
           f"buffer_store_dwordx2 {vr(T,2)}, v{KXW}, s[8:11], s{S_KX} offen",
           "s_mov_b64 exec, -1"]
    Q = [smf(QA0 + 4 * t, Areg(k), wq(t, k)) for k in range(10) for t in range(2)]
    V = [smf(VA0 + 4 * t, Areg(k), wv(t, k)) for k in range(10) for t in range(2)]
    kop = [f"buffer_load_dwordx4 {vr(KOP+4*k,4)}, v{KXR}, s[8:11], s{S_KX} offen offset:{k*1024} sc1" for k in range(2)]
    def smem_mfmas():
        SMB = KOP + 8
        a(f"v_mfma_f32_16x16x32_bf16 {vr(QA1,4)}, {vr(KOP,4)}, {vr(Areg(0),4)}, 0")
        a(f"v_mfma_f32_16x16x32_bf16 {vr(SMB,4)}, {vr(KOP,4)}, {vr(Areg(1),4)}, 0")
        a(f"v_mfma_f32_16x16x32_bf16 {vr(QA1,4)}, {vr(KOP+4,4)}, {vr(Areg(2),4)}, {vr(QA1,4)}")
        a(f"v_mfma_f32_16x16x32_bf16 {vr(SMB,4)}, {vr(KOP+4,4)}, {vr(Areg(3),4)}, {vr(SMB,4)}")
    smem_sum = f"v_pk_add_f32 {vr(QA1,2)}, {vr(QA1,2)}, {vr(KOP+10,2)}"
    if last:
        a(f"s_add_u32 s46, s{S_KM}, {WS_KM}")
        kt2[3] = f"buffer_store_dwordx2 {vr(T,2)}, v{KXW}, s[8:11], s46 offen sc1"
    X = V if last else Q
    a(X[0]); a(X[1])
    a(X[2]); a(ktail[0]); a(X[3]); a(ktail[1]); a(ktail[2]); a(X[4])
    a(ktm); a(X[5]); a(X[6])
    a(kt2[0]); a(X[7]); a(kt2[1]); a(kt2[2]); a(X[8]); a(kt2[3]); a(kt2[4])
    for j, x in enumerate(X[9:]):
        a(x)
        if not last and j == TOKP[1]: a(tok[3])
        if not last and j == 7 and RZPOS != 3:
            a(f"s_mov_b64 exec, s[{M_AGW}:{M_AGW+1}]"); a(f"buffer_store_dwordx2 {vr(Z,2)}, v{AGW}, s[8:11], s{S_AGZ} offen"); a(me)
    SA, SB, SM = KACC, QA0, QA1
    def vm_store():
        a(f"s_add_u32 s44, s{S_KM}, {WS_VM}")
        a(f"buffer_store_dword v{VP}, v{VMW}, s[8:11], s44 offen sc1")
        a(f"buffer_store_dword v{VP+1}, v{VMW}, s[8:11], s44 offen offset:64 sc1")
    if last:
        a("s_nop 7")
        for x in fold(VA0, VP) + fold(VA1, VP + 1): a(x)
        vm_store()
        a.lab(f"{n}_end")
        return
    st(2)
    for _ in range(PADS.get(2, 0)): a("s_nop 0")
    qtail = [f"v_pk_add_f32 {vr(QA0,2)}, {vr(QA0,2)}, {vr(QA0+2,2)}", f"v_pk_add_f32 {vr(QA1,2)}, {vr(QA1,2)}, {vr(QA1+2,2)}",
             f"v_cvt_pk_bf16_f32 v{T}, v{QA0}, v{QA0+1}", f"v_cvt_pk_bf16_f32 v{T+1}, v{QA1}, v{QA1+1}",
             f"ds_write_b16 v{XW}, v{T}", f"ds_write_b16_d16_hi v{XW}, v{T} offset:{XST}",
             f"ds_write_b16 v{XW}, v{T+1} offset:32", f"ds_write_b16_d16_hi v{XW}, v{T+1} offset:{32+XST}"]
    def q_tail(extra=None):
        a(V[0]); a(V[1])
        a(V[2]); a(qtail[0]); a(qtail[1]); a(V[3]); a(qtail[2]); a(qtail[3])
        for j in range(4):
            a(V[4 + j]); a(qtail[4 + j])
            if extra and j in extra:
                for x in extra[j]: a(x)
        a(V[8])
        a("s_waitcnt lgkmcnt(0)")
        a("s_barrier")
        st(3)
    MX, MC, T1 = T, T + 2, T + 1
    PT = Areg(9); ONE = Areg(8); O0, O1, LS = Areg(4), Areg(5), Areg(0)
    xq = [f"ds_read_b128 {vr(Areg(k),4)}, v{XR} offset:{k*64}" for k in range(4)]
    thr = hex(f2u(SAFE_T))
    NANP = "0x7fc07fc0"
    a(f"s_cmp_ge_u32 s{S_W}, 2")
    a(f"s_cbranch_scc1 {n}_w23")
    q_tail()
    a(f"s_lshl_b32 s44, s{S_W}, 7")
    a(f"v_add_u32 v{T+2}, s44, v{KT}")
    for x in xq: a(x)
    for k32 in range(4): a(f"ds_read_b128 {vr(KOP+4*k32,4)}, v{T+2} offset:{k32*2048}")
    a(f"s_lshl_b32 s44, s{S_W}, 3")
    a(f"s_add_u32 s44, s44, {L_PT}")
    a(V[9]); a(f"v_add_u32 v{T+3}, s44, v{LN16}")
    a(V[10]); a(V[11]); a(V[12])
    for k32 in range(4):
        c = "0" if k32 == 0 else vr(SA, 4)
        a(f"s_waitcnt lgkmcnt({3-k32})")
        a(f"v_mfma_f32_16x16x32_bf16 {vr(SA,4)}, {vr(KOP+4*k32,4)}, {vr(Areg(k32),4)}, {c}")
    a(V[13]); a(f"v_mov_b32 v{T+2}, -1"); a(V[14])
    a(f"v_pk_mul_f32 {vr(SA,2)}, {vr(SA,2)}, s[{S_SC2}:{S_SC2+1}]")
    a(f"v_pk_mul_f32 {vr(SA+2,2)}, {vr(SA+2,2)}, s[{S_SC2}:{S_SC2+1}]")
    a(f"v_max3_f32 v{T}, abs(v{SA}), abs(v{SA+1}), abs(v{SA+2})")
    a(f"v_exp_f32 v{SA}, v{SA}")
    a(f"v_max_f32 v{T}, v{T}, abs(v{SA+3})") if False else a(f"v_max3_f32 v{T}, v{T}, abs(v{SA+3}), abs(v{SA+3})")
    a(f"v_exp_f32 v{SA+1}, v{SA+1}")
    a(f"v_cmp_ge_f32 vcc, {thr}, v{T}")
    a(f"v_exp_f32 v{SA+2}, v{SA+2}")
    a(f"v_exp_f32 v{SA+3}, v{SA+3}")
    a(f"v_cvt_pk_bf16_f32 v{T}, v{SA}, v{SA+1}")
    a(f"v_cndmask_b32 v{T}, v{T+2}, v{T}, vcc")
    a(f"v_cvt_pk_bf16_f32 v{T+1}, v{SA+2}, v{SA+3}")
    a(V[15])
    a(f"ds_write_b64 v{T+3}, {vr(T,2)}")
    for i in range(16, 20): a(V[i])
    a("s_waitcnt vmcnt(0)")
    a(f"s_branch {n}_pj")
    a.lab(f"{n}_w23")
    a(f"s_cmp_eq_u32 s{S_W}, 3")
    a(f"s_cbranch_scc1 {n}_w3")
    q_tail({KOPJ: kop})
    for x in xq: a(x)
    a(f"v_lshl_add_u32 v{T+3}, v1, 2, s{S_LPM}")
    a(f"v_mov_b32 v{T+2}, -1")
    for i in range(9, 9 + KV): a(V[i])
    a("s_waitcnt vmcnt(0) lgkmcnt(0)")
    a("s_mov_b32 s31, 0")
    smem_mfmas()
    rest = list(range(9 + KV, 20))
    for i in rest[:2]: a(V[i])
    if len(rest) < 2: a("s_nop 7")
    a(smem_sum)
    a(f"v_cmp_u_f32 vcc, v{SM}, v{SM+1}")
    a(f"s_cbranch_vccnz {n}_kretry")
    a.lab(f"{n}_kok")
    a(f"v_pk_mul_f32 {vr(SM,2)}, {vr(SM,2)}, s[{S_SC2}:{S_SC2+1}]")
    a(f"v_max3_f32 v{T}, abs(v{SM}), abs(v{SM+1}), abs(v{SM+1})")
    a(f"v_exp_f32 v{SM}, v{SM}")
    a(f"v_cmp_ge_f32 vcc, {thr}, v{T}")
    a(f"v_exp_f32 v{SM+1}, v{SM+1}")
    a("s_nop 0")
    a(f"v_cvt_pk_bf16_f32 v{T}, v{SM}, v{SM+1}")
    a(f"v_cndmask_b32 v{T}, v{T+2}, v{T}, vcc")
    a(f"ds_write_b32 v{T+3}, v{T}")
    for i in rest[2:]: a(V[i])
    a(f"s_branch {n}_pj")
    a.lab(f"{n}_w3")
    q_tail()
    a(f"s_sub_u32 s44, s{S_ZL}, 3072")
    a(f"s_sub_u32 s46, s{S_ZL4}, 768")
    a(f"s_lshl_b32 s47, s{S_C}, 10")
    a(f"s_add_u32 s47, s47, s{S_KXZ}")
    zs = [f"buffer_store_dwordx4 {vr(Z,4)}, v{LN16}, s[8:11], s44 offen offset:{u*1024}" for u in range(4)]
    zs += [f"buffer_store_dwordx4 {vr(Z,4)}, v{LN16}, s[8:11], s46 offen", f"buffer_store_dwordx4 {vr(Z,4)}, v{LN16}, s[8:11], s47 offen"]
    a(V[9]); a(V[10]); a(V[11])
    for j, x in enumerate(zs):
        a(x)
        if j < 2: a(V[12 + j])
    for i in range(14, 20): a(V[i])
    a.lab(f"{n}_pj")
    if STAMP_FINE is True: st(11)
    a(f"v_add_u32 v{T+2}, {L_PT}, v{LN16}")
    a(f"v_lshl_add_u32 v{T+3}, v1, 2, s{S_LPM}")
    a(f"ds_read_b128 {vr(Areg(6),4)}, v{VT}")
    a(f"ds_read_b128 {vr(Areg(7),4)}, v{VT} offset:256")
    a(f"v_mov_b32 v{ONE}, 0x3f803f80")
    a(f"v_mov_b32 v{ONE+1}, 0x3f803f80")
    a(f"v_mov_b64 {vr(ONE+2,2)}, {vr(ONE,2)}")
    a("s_waitcnt lgkmcnt(2)")
    a("s_barrier")
    st(4)
    a(f"ds_read_b128 {vr(PT,4)}, v{T+2}")
    a(f"ds_read_b32 v{PB}, v{T+3}")
    a(f"ds_read_b32 v{PB+3}, v{T+3}")
    for x in fold(VA0, VP) + fold(VA1, VP + 1): a(x)
    st(5)
    a.lab(f"{n}_pv")
    def fallback():
        slots = [Areg(4), Areg(5), Areg(6), Areg(7), Areg(8), Areg(9), Areg(4), Areg(5)]
        def ktok(i):
            k32, tb = divmod(i, 2)
            return f"ds_read_b128 {vr(slots[i],4)}, v{KT} offset:{k32*2048 + tb*128}"
        a("s_waitcnt vmcnt(0) lgkmcnt(0)")
        for x in kop: a(x)
        for x in xq: a(x)
        for i in range(6): a(ktok(i))
        a("s_waitcnt vmcnt(0) lgkmcnt(0)")
        for i in range(6):
            k32, tb = divmod(i, 2)
            acc = (SA, SB)[tb]
            c = "0" if k32 == 0 else vr(acc, 4)
            a(f"v_mfma_f32_16x16x32_bf16 {vr(acc,4)}, {vr(slots[i],4)}, {vr(Areg(k32),4)}, {c}")
        a(ktok(6)); a(ktok(7))
        a("s_waitcnt lgkmcnt(0)")
        for i in range(6, 8):
            k32, tb = divmod(i, 2)
            acc = (SA, SB)[tb]
            a(f"v_mfma_f32_16x16x32_bf16 {vr(acc,4)}, {vr(slots[i],4)}, {vr(Areg(k32),4)}, {vr(acc,4)}")
        smem_mfmas()
        a(f"ds_read_b128 {vr(Areg(6),4)}, v{VT}")
        a(f"ds_read_b128 {vr(Areg(7),4)}, v{VT} offset:256")
        a("s_nop 7")
        a(smem_sum)
        a(f"v_mov_b32 v{ONE}, 0x3f803f80")
        a(f"v_mov_b32 v{ONE+1}, 0x3f803f80")
        a(f"v_mov_b64 {vr(ONE+2,2)}, {vr(ONE,2)}")
        a(f"v_max3_f32 v{MX}, v{SA}, v{SA+1}, v{SA+2}")
        a(f"v_max3_f32 v{MX}, v{MX}, v{SA+3}, v{SB}")
        a(f"v_max3_f32 v{MX}, v{MX}, v{SB+1}, v{SB+2}")
        a(f"v_max3_f32 v{MX}, v{MX}, v{SB+3}, v{SM}")
        a(f"v_max_f32 v{MX}, v{MX}, v{SM+1}")
        a(f"v_mov_b32 v{T1}, v{MX}")
        a("s_nop 1")
        a(f"v_permlane32_swap_b32 v{MX}, v{T1}")
        a(f"v_max_f32 v{MX}, v{MX}, v{T1}")
        a(f"v_mov_b32 v{T1}, v{MX}")
        a("s_nop 1")
        a(f"v_permlane16_swap_b32 v{MX}, v{T1}")
        a(f"v_max_f32 v{MX}, v{MX}, v{T1}")
        a(f"v_mul_f32 v{MC}, s{S_SC}, v{MX}")
        for p in (SA, SA + 2, SB, SB + 2, SM):
            a(f"v_pk_fma_f32 {vr(p,2)}, {vr(p,2)}, s[{S_SC2}:{S_SC2+1}], {vr(MC,2)} op_sel_hi:[1,1,0] neg_lo:[0,0,1] neg_hi:[0,0,1]")
        regs = [SA, SA + 1, SA + 2, SA + 3, SB, SB + 1, SB + 2, SB + 3, SM, SM + 1]
        for r in regs: a(f"v_exp_f32 v{r}, v{r}")
        a("s_nop 0")
        a(f"v_cvt_pk_bf16_f32 v{PT}, v{SA}, v{SA+1}")
        a(f"v_cvt_pk_bf16_f32 v{PT+1}, v{SA+2}, v{SA+3}")
        a(f"v_cvt_pk_bf16_f32 v{PT+2}, v{SB}, v{SB+1}")
        a(f"v_cvt_pk_bf16_f32 v{PT+3}, v{SB+2}, v{SB+3}")
        a(f"v_cvt_pk_bf16_f32 v{PB}, v{SM}, v{SM+1}")
        a(f"v_cvt_pk_bf16_f32 v{PB+3}, v{SM}, v{SM+1}")
    st(6)
    for _ in range(PADS.get(6, 0)): a("s_nop 0")
    LS_ = [KOP + 8, Areg(1), KACC, QA1, Areg(6), KOP]
    ops = [(tau, kap) for kap in range(2) for tau in range(5)]
    def wo_read(i, slot):
        tau, kap = ops[i]
        return [f"ds_read_b128 {vr(slot,4)}, v{WOR} offset:{(tau*2+kap)*2048}",
                f"ds_read_b128 {vr(slot+4,4)}, v{WOR} offset:{(tau*2+kap)*2048 + 1024}"]
    a("s_waitcnt lgkmcnt(0)")
    M6 = [f"v_mfma_f32_16x16x32_bf16 {vr(LS,4)}, {vr(ONE,4)}, {vr(PT,4)}, 0",
          f"v_mfma_f32_16x16x32_bf16 {vr(O0,4)}, {vr(Areg(6),4)}, {vr(PT,4)}, 0",
          f"v_mfma_f32_16x16x32_bf16 {vr(O1,4)}, {vr(Areg(7),4)}, {vr(PT,4)}, 0",
          f"v_mfma_f32_16x16x16_bf16 {vr(LS,4)}, {vr(ONE,2)}, {vr(PB,2)}, {vr(LS,4)}",
          f"v_mfma_f32_16x16x16_bf16 {vr(O0,4)}, {vr(VP,2)}, {vr(PB,2)}, {vr(O0,4)}",
          f"v_mfma_f32_16x16x16_bf16 {vr(O1,4)}, {vr(VP,2)}, {vr(PB+2,2)}, {vr(O1,4)}"]
    zkm = a.uid("KMS")
    a(M6[0])
    a(f"s_cmp_lg_u32 s{S_KMW}, 2")
    a(f"s_cbranch_scc1 {zkm}")
    a(f"s_add_u32 s44, s{S_KM}, {WS_KM}")
    for k in range(2):
        a(f"buffer_store_dwordx4 {vr(KOP+4*k,4)}, v{KXR}, s[8:11], s44 offen offset:{k*1024} sc1")
    a.lab(zkm)
    wr = [x for i in range(4) for x in wo_read(i, LS_[i])]
    a(f"s_add_u32 s44, s{S_KM}, {WS_VM}")
    a(M6[1]); a(wr[0]); a(wr[1]); a(M6[2]); a(wr[2]); a(wr[3])
    a(f"buffer_store_dword v{VP}, v{VMW}, s[8:11], s44 offen sc1")
    a(M6[3]); a(wr[4]); a(wr[5]); a(M6[4]); a(tok[4]); a(wr[6]); a(wr[7]); a(M6[5])
    a(f"buffer_store_dword v{VP+1}, v{VMW}, s[8:11], s44 offen offset:64 sc1")
    st(7)
    ACC = [VA1, Areg(3), Areg(0), Areg(4), Areg(5)]
    zero(a, VA1, 4)
    a(f"v_cmp_u_f32 vcc, v{LS}, v{LS}")
    a(f"v_rcp_f32 v{T1}, v{LS}")
    a(f"s_cbranch_vccnz {n}_fbk")
    a.lab(f"{n}_fbd")
    a(f"s_mov_b32 s{S_FB}, 0")
    for O in (O0, O1):
        a(f"v_pk_mul_f32 {vr(O,2)}, {vr(O,2)}, {vr(T,2)} op_sel:[0,1] op_sel_hi:[1,1]")
        a(f"v_pk_mul_f32 {vr(O+2,2)}, {vr(O+2,2)}, {vr(T,2)} op_sel:[0,1] op_sel_hi:[1,1]")
    a(f"v_cvt_pk_bf16_f32 v{O0}, v{O0}, v{O0+1}")
    a(f"v_cvt_pk_bf16_f32 v{O0+1}, v{O0+2}, v{O0+3}")
    a(f"v_cvt_pk_bf16_f32 v{O1}, v{O1}, v{O1+1}")
    a(f"v_cvt_pk_bf16_f32 v{O1+1}, v{O1+2}, v{O1+3}")
    a(f"ds_write_b64 v{OW}, {vr(O0,2)}")
    a(f"ds_write_b64 v{OW}, {vr(O1,2)} offset:32")
    for x in wo_read(4, LS_[4]) + wo_read(5, LS_[5]): a(x)
    zero(a, Areg(3), 4); zero(a, Areg(0), 4)
    a("s_waitcnt vmcnt(3) lgkmcnt(4)")
    a("s_barrier")
    st(8)
    for _ in range(PADS.get(8, 0)): a("s_nop 0")
    OA = [T, Areg(8)]
    a(f"ds_read_b128 {vr(OA[0],4)}, v{OR_}")
    a(f"ds_read_b128 {vr(OA[1],4)}, v{OR_} offset:128")
    zero(a, Areg(4), 8)
    a("s_waitcnt lgkmcnt(1)")
    for i in range(10):
        tau, kap = ops[i]
        if i == 5: a("s_waitcnt lgkmcnt(8)")
        if i >= 6: a(f"s_waitcnt lgkmcnt({2*(9-i)})")
        slot = LS_[i] if i < 6 else LS_[i - 6]
        a(smf(ACC[tau], OA[kap], vr(slot, 8)))
        if i < 4:
            for x in wo_read(6 + i, LS_[i]): a(x)
    st(9)
    R4 = Areg(6); Q5 = Areg(8)
    for tau in range(3):
        a(f"v_pk_add_f32 {vr(ACC[tau],2)}, {vr(ACC[tau],2)}, {vr(ACC[tau]+2,2)}")
    for tau in range(3):
        a(f"v_cvt_pk_bf16_f32 v{R4+tau}, v{ACC[tau]}, v{ACC[tau]+1}")
    a(f"v_pk_add_f32 {vr(ACC[3],2)}, {vr(ACC[3],2)}, {vr(ACC[3]+2,2)}")
    a(f"v_cvt_pk_bf16_f32 v{R4+3}, v{ACC[3]}, v{ACC[3]+1}")
    a(f"v_pk_add_f32 {vr(ACC[4],2)}, {vr(ACC[4],2)}, {vr(ACC[4]+2,2)}")
    a(f"v_permlane32_swap_b32 v{R4}, v{R4+2}")
    a(f"v_cvt_pk_bf16_f32 v{Q5}, v{ACC[4]}, v{ACC[4]+1}")
    a(f"v_cvt_pk_bf16_f32 v{Q5+2}, v{ACC[4]}, v{ACC[4]+1}")
    a(f"v_permlane32_swap_b32 v{R4+1}, v{R4+3}")
    a("s_nop 0")
    a(f"v_permlane32_swap_b32 v{Q5}, v{Q5+2}")
    a(f"v_permlane16_swap_b32 v{R4}, v{R4+1}")
    a(f"v_permlane16_swap_b32 v{R4+2}, v{R4+3}")
    a(f"v_mov_b32 v{Q5+1}, v{Q5}")
    a(f"buffer_store_dwordx4 {vr(R4,4)}, v{RSG}, s[8:11], s{S_RSL} offen")
    a(f"v_mov_b32 v{Q5+3}, v{Q5+2}")
    a(f"v_permlane16_swap_b32 v{Q5}, v{Q5+1}")
    a("s_nop 0")
    a(f"v_permlane16_swap_b32 v{Q5+2}, v{Q5+3}")
    a(f"s_mov_b64 exec, s[{M_L16}:{M_L16+1}]")
    a(f"buffer_store_dwordx4 {vr(Q5,4)}, v{RS1}, s[8:11], s{S_RSL} offen")
    a("s_mov_b64 exec, -1")
    st(10)
    a(tok[5])
    zero(a, KACC, 20)
    a(f"v_mov_b64 {vr(KOP,2)}, -1")
    a(f"v_mov_b64 {vr(KOP+2,2)}, -1")
    a(f"s_cmp_ge_u32 s{S_W}, 2")
    a(f"s_cbranch_scc1 {n}_srv")
    R = Areg(0); D = Areg(8)
    G = Areg(0); SX = Areg(5); DD = [Areg(6), Areg(7), Areg(8), Areg(9), KOP + 4]
    GA = KOP + 8
    GL = KOP + 9
    def gather_prep():
        a(f"v_mov_b32 v{GA}, v{AGV}")
        a(f"v_xor_b32 v{KT}, 16384, v{KT}")
        a(f"v_xor_b32 v{VT}, 16384, v{VT}")
        for m in range(4): a(f"v_mov_b32_dpp v{SX+m}, v{SEL+m} row_ror:8 row_mask:0xf bank_mask:0xf")
        for m in range(4): a(f"v_cndmask_b32 v{SX+m}, v{SEL+m}, v{SX+m}, s[{M_HI}:{M_HI+1}]")
        a(f"v_bfe_u32 v{T}, v1, 3, 1")
        a(f"v_lshrrev_b32 v{T+1}, 5, v1")
        a(f"v_lshl_add_u32 v{T}, v{T}, 1, v{T+1}")
        a(f"v_lshlrev_b32 v{T}, 7, v{T}")
        a(f"v_and_b32 v{T+1}, 7, v1")
        a(f"v_lshl_add_u32 v{T}, v{T+1}, 4, v{T}")
        a(f"v_bfe_u32 v{T+1}, v1, 4, 1")
        a(f"v_lshl_add_u32 v{T}, v{T+1}, 3, v{T}")
        a(f"s_mul_i32 s44, s{S_W}, 2560")
        a(f"s_add_u32 s44, s44, {L_MEM}")
        a(f"v_add_u32 v{GL}, s44, v{T}")
    gather_prep()
    if SLEEP_RS: a(f"s_sleep {SLEEP_RS}")
    cs(1)
    def rs_loads():
        a(f"s_mov_b64 exec, s[{M_RSR}:{M_RSR+1}]")
        for t in range(4):
            a(f"buffer_load_dwordx4 {vr(R+4*t,4)}, v{RSR}, s[8:11], s{S_RDL} offen offset:{t*1280} sc1")
        a("s_mov_b64 exec, -1")
    rs_loads()
    a("s_mov_b32 s31, 0")
    a.lab(f"{n}_rsm")
    for t in range(4):
        c = "0" if t == 0 else vr(D, 4)
        a(f"s_waitcnt vmcnt({3-t})")
        if t == 0: cs(2)
        a(f"v_mfma_f32_16x16x32_bf16 {vr(D,4)}, {vr(SEL,4)}, {vr(R+4*t,4)}, {c}")
    cs(4)
    a(f"s_mov_b64 exec, s[{M_AGW}:{M_AGW+1}]")
    a("s_nop 6")
    a(f"v_pk_add_f32 {vr(T,2)}, {vr(D,2)}, {vr(D+2,2)}")
    a(f"v_cvt_pk_bf16_f32 v{D}, v{D}, v{D+1}")
    a(f"v_cvt_pk_bf16_f32 v{D+1}, v{D+2}, v{D+3}")
    a(f"v_cmp_u_f32 vcc, v{T}, v{T+1}")
    a(f"s_cbranch_vccnz {n}_rsr")
    a.lab(f"{n}_rsd")
    cs(5)
    if STAMP_FINE == 2: a(f"s_add_u32 s83, s83, s31")
    a(f"buffer_store_dwordx2 {vr(D,2)}, v{AGW}, s[8:11], s{S_AGRW} offen sc1")
    a(f"buffer_store_dwordx2 {vr(D,2)}, v{AGW}, s[8:11], s{S_AGW} offen")
    a("s_mov_b64 exec, -1")
    for x in toggle_offsets(): a(x)
    a("s_barrier")
    if SLEEP_AG: a(f"s_sleep {SLEEP_AG}")
    a(f"s_branch {n}_gat")
    a.lab(f"{n}_rsr")
    a(f"s_mov_b64 exec, s[{M_RSR}:{M_RSR+1}]")
    maxtree(a, T, range(R, R + 16))
    a(f"v_cmp_eq_u32 vcc, -1, v{T}")
    a(f"s_mov_b64 exec, s[{M_AGW}:{M_AGW+1}]")
    a(f"s_cbranch_vccz {n}_rsd")
    poll_counter(a, f"{n}_rsd")
    rs_loads()
    a(f"s_branch {n}_rsm")
    a.lab(f"{n}_kretry")
    maxtree(a, T + 1, range(KOP, KOP + 8))
    a(f"v_cmp_eq_u32 vcc, -1, v{T+1}")
    a(f"s_cbranch_vccz {n}_kok")
    poll_counter(a, f"{n}_kok")
    if STAMPS: a("s_add_u32 s84, s84, 1")
    for x in kop: a(x)
    a("s_waitcnt vmcnt(0)")
    smem_mfmas()
    a("s_nop 7")
    a(smem_sum)
    a(f"v_cmp_u_f32 vcc, v{SM}, v{SM+1}")
    a(f"s_cbranch_vccnz {n}_kretry")
    a(f"s_branch {n}_kok")
    a.lab(f"{n}_fbk")
    a(f"s_cmp_eq_u32 s{S_FB}, 1")
    a(f"s_cbranch_scc1 {n}_fbd")
    a(f"s_mov_b32 s{S_FB}, 1")
    fallback()
    a(f"s_branch {n}_pv")
    if TALIGN: a(f".p2align {TALIGN}")
    a.lab(f"{n}_srv")
    if TLSTEP:
        zz = a.uid("TS")
        a(f"s_cmp_lg_u32 s{S_W}, 2")
        a(f"s_cbranch_scc1 {zz}")
        a("s_memtime s[100:101]")
        a("s_waitcnt lgkmcnt(0)")
        a(f"v_mov_b32 v{T}, s100")
        a("s_lshl_b32 s44, s2, 7")
        a(f"s_add_u32 s44, s44, s{S_STEP}")
        a("s_lshl_b32 s44, s44, 2")
        a(f"s_add_u32 s44, s44, {WS_FLAG + 196608}")
        a(f"v_mov_b32 v{T+1}, 0")
        a(f"buffer_store_dword v{T}, v{T+1}, s[8:11], s44 offen")
        a("s_memrealtime s[100:101]")
        a("s_waitcnt lgkmcnt(0)")
        a(f"v_mov_b32 v{T}, s100")
        a(f"buffer_store_dword v{T}, v{T+1}, s[8:11], s44 offen offset:256")
        a.lab(zz)
    if WAIT_TOKENS:
        zt = a.uid("WT")
        a(f"s_add_u32 s50, s{S_STEP}, 2")
        a("s_and_b32 s51, s50, 7")
        a("s_cmp_lg_u32 s51, 0")
        a(f"s_cbranch_scc1 {zt}")
        a("s_lshr_b32 s50, s50, 3")
        a("s_cmp_ge_u32 s50, 8")
        a(f"s_cbranch_scc1 {zt}")
        WAIT_TOKENS(a, "s50")
        a.lab(zt)
    gather_prep()
    for x in toggle_offsets(): a(x)
    cs(1)
    a("s_barrier")
    if SLEEP_W23: a(f"s_sleep {SLEEP_W23}")
    if TALIGN:
        a(f"s_branch {n}_gat")
        a(f".p2align {TALIGN}")
    a.lab(f"{n}_gat")
    cs(7)
    a("s_mov_b32 s31, 0")
    a.lab(f"{n}_agp")
    if SPLIT_AG:
        a(f"s_mov_b64 exec, s[{M_ODD}:{M_ODD+1}]")
        for u in range(5):
            a(f"buffer_load_dwordx4 {vr(G+4*u,4)}, v{GA}, s[8:11], 0 offen offset:{u*512} sc1")
        a(f"s_not_b64 exec, exec")
        for u in range(5):
            a(f"buffer_load_dwordx4 {vr(G+4*u,4)}, v{GA}, s[8:11], 0 offen offset:{u*512} sc1")
        a("s_mov_b64 exec, -1")
        for u in range(5):
            a(f"s_waitcnt vmcnt({4-u})")
            a(f"v_mfma_f32_16x16x32_bf16 {vr(DD[u],4)}, {vr(G+4*u,4)}, {vr(SX,4)}, 0")
    else:
        for u in range(5):
            a(f"buffer_load_dwordx4 {vr(G+4*u,4)}, v{GA}, s[8:11], 0 offen offset:{u*512} sc1")
        for u in range(5):
            a(f"s_waitcnt vmcnt({4-u})")
            a(f"v_mfma_f32_16x16x32_bf16 {vr(DD[u],4)}, {vr(G+4*u,4)}, {vr(SX,4)}, 0")
    a("s_nop 2")
    a(f"v_pk_add_f32 {vr(T+2,2)}, {vr(DD[0],2)}, {vr(DD[0]+2,2)}")
    for u in range(1, 5):
        if u == 4: a("s_nop 0")
        a(f"v_pk_add_f32 {vr(T+2,2)}, {vr(T+2,2)}, {vr(DD[u],2)}")
        a(f"v_pk_add_f32 {vr(T+2,2)}, {vr(T+2,2)}, {vr(DD[u]+2,2)}")
    for u in range(5):
        a(f"v_cvt_pk_bf16_f32 v{DD[u]}, v{DD[u]}, v{DD[u]+1}")
        a(f"v_cvt_pk_bf16_f32 v{DD[u]+1}, v{DD[u]+2}, v{DD[u]+3}")
        if u == 0: a(f"v_cmp_u_f32 vcc, v{T+2}, v{T+3}")
    a(f"s_cbranch_vccnz {n}_agr")
    a.lab(f"{n}_agd")
    cs(8)
    if STAMP_FINE == 2: a(f"s_add_u32 s85, s85, s31")
    for u in range(5):
        a(f"ds_write_b64 v{GL}, {vr(DD[u],2)} offset:{u*512}")
    a(f"s_cmp_lt_u32 s{S_STEP}, 63")
    a(f"s_cbranch_scc1 {loop}")
    a(f"s_branch {n}_end")
    a.lab(f"{n}_agr")
    maxtree(a, T, range(G, G + 20))
    a(f"v_cmp_eq_u32 vcc, -1, v{T}")
    a(f"s_cbranch_vccz {n}_agd")
    poll_counter(a, f"{n}_agd")
    a(f"s_branch {n}_agp")
    a.lab(f"{n}_end")

def role_chain(a, n):
    a(f"s_lshr_b32 s44, s{S_R}, 1")
    a(f"s_lshl_b32 s{S_H}, s{S_X}, 4")
    a(f"s_add_u32 s{S_H}, s{S_H}, s44")
    a(f"s_and_b32 s{S_C}, s{S_R}, 1")
    a(f"s_load_dwordx2 s[8:9], s[0:1], {KA['ws']}")
    a(f"s_load_dwordx2 s[60:61], s[0:1], {KA['dbg']}")
    a("s_waitcnt lgkmcnt(0)")
    a(f"s_mov_b32 s10, {hex(WS_SIZE)}")
    a(f"s_mov_b32 s11, {hex(SRD3)}")
    a(f"s_add_u32 s44, s8, {WS_RING}")
    a("s_and_b32 s44, s44, 0x1fffff")
    a("s_sub_u32 s44, 0x200000, s44")
    a("s_and_b32 s44, s44, 0x1fffff")
    a(f"s_add_u32 s{S_RB}, s44, {WS_RING}")
    pr = a.uid("PR")
    if PARITY is None and not EXT_PROBE:
        a(f"s_lshl_b32 s44, s{S_X}, 7")
        a(f"s_lshl_b32 s45, s{S_R}, 2")
        a("s_add_u32 s44, s44, s45")
        a(f"s_add_u32 s44, s44, s{S_W}")
        a("s_cmp_lg_u32 s44, 0")
        a(f"s_cbranch_scc1 {pr}_done")
        a("s_mov_b32 s50, -1")
        a("s_mov_b32 s51, -1")
        a("v_mov_b32 v40, 0")
        a("s_mov_b32 s46, 0")
        a.lab(f"{pr}_l")
        for p in range(2):
            a("s_lshl_b32 s47, s46, 14")
            a(f"s_add_u32 s47, s47, s{S_RB}")
            a(f"s_add_u32 s47, s47, {6144 + p*8192}")
            a("buffer_store_dword v40, v40, s[8:11], s47 offen sc1")
            a("s_waitcnt vmcnt(0)")
            a("s_memtime s[62:63]")
            a("s_waitcnt lgkmcnt(0)")
            a("buffer_load_dword v41, v40, s[8:11], s47 offen sc1")
            a("s_waitcnt vmcnt(0)")
            a("s_memtime s[64:65]")
            a("s_waitcnt lgkmcnt(0)")
            a("s_sub_u32 s48, s64, s62")
            a(f"s_min_u32 s{50+p}, s{50+p}, s48")
        a("s_add_u32 s46, s46, 1")
        a("s_cmp_lt_u32 s46, 12")
        a(f"s_cbranch_scc1 {pr}_l")
        a("s_cmp_lt_u32 s51, s50")
        a("s_cselect_b32 s47, 2, 1")
        a("v_mov_b32 v41, s47")
        a("v_mov_b32 v40, 68")
        a("v_cmp_eq_u32 vcc, 0, v0")
        a("s_and_saveexec_b64 s[44:45], vcc")
        a("global_store_dword v40, v41, s[60:61] sc1")
        a("s_mov_b64 exec, -1")
        a.lab(f"{pr}_done")
    setup_regs(a)
    for r in range(0, 4, 2): a(f"v_mov_b64 {vr(TMP+2+r,2)}, -1")
    Z = TMP + 2
    for par in range(2):
        a(f"s_mov_b32 s{S_PAR}, {par*8192}")
        init_offsets(a)
        for slot in range(2):
            if par == 0:
                a(f"s_mov_b64 exec, s[{M_C8}:{M_C8+1}]")
                a(f"s_add_u32 s44, s{S_KX}, {slot*0x10000}")
                a(f"buffer_store_dwordx2 {vr(Z,2)}, v{KXW}, s[8:11], s44 offen")
            if slot == 0:
                a(f"s_mov_b64 exec, s[{M_AGW}:{M_AGW+1}]")
                for sig in range(3):
                    a(f"s_add_u32 s44, s{S_AGW}, {sig*65536}")
                    a(f"buffer_store_dwordx2 {vr(Z,2)}, v{AGW}, s[8:11], s44 offen sc1")
                    a(f"s_add_u32 s44, s{S_AGRW}, {sig*65536}")
                    a(f"buffer_store_dwordx2 {vr(Z,2)}, v{AGW}, s[8:11], s44 offen sc1")
            a(f"s_mov_b64 exec, s[{M_RSR}:{M_RSR+1}]")
            a(f"s_add_u32 s44, s{S_RDL}, {slot*0x100000}")
            for t in range(4):
                a(f"buffer_store_dwordx4 {vr(Z,4)}, v{RSR}, s[8:11], s44 offen offset:{t*1280} sc1")
            a("s_mov_b64 exec, -1")
    load_weights(a)
    a(f"s_mov_b32 s{S_FB}, 0")
    a(f"s_mov_b32 s{S_LPM}, {L_PM}")
    a(f"s_mov_b32 s{M_ODD}, 0xffff0000")
    a(f"s_mov_b32 s{M_ODD+1}, 0xffff0000")
    a(f"s_lshl_b32 s{S_KMW}, s{S_C}, 2")
    a(f"s_add_u32 s{S_KMW}, s{S_KMW}, s{S_W}")
    if TLF: TLF(a, 1, 44)
    a("v_and_b32 v40, 3, v1")
    a("v_lshlrev_b32 v41, 2, v40")
    a("v_add_u32 v41, 64, v41")
    a("v_mov_b32 v42, 64")
    thr = [64, 1 if PARITY is None else 0, 128 if START_FUSED else 0, 8 if START_FUSED else 0]
    for ln in range(1, 4):
        a(f"v_mov_b32 v43, {thr[ln]}")
        a(f"v_cmp_eq_u32 vcc, {ln}, v40")
        a("s_nop 1")
        a("v_cndmask_b32 v42, v42, v43, vcc")
    a("s_mov_b32 s31, 0")
    a.lab(f"{n}_sw")
    a("global_load_dword v44, v41, s[60:61] sc1")
    poll_counter(a, f"{n}_sw2")
    a("s_waitcnt vmcnt(0)")
    a("v_cmp_lt_u32 vcc, v44, v42")
    a(f"s_cbranch_vccnz {n}_sw")
    a.lab(f"{n}_sw2")
    if PARITY is None:
        a("v_readlane_b32 s44, v44, 1")
        a("s_nop 3")
        a("s_cmp_eq_u32 s44, 2")
        a(f"s_cselect_b32 s{S_PAR}, 8192, 0")
    else:
        a(f"s_mov_b32 s{S_PAR}, {PARITY*8192}")
    init_offsets(a)
    a(f"s_mov_b32 s{S_STEP}, 0")
    if START_FUSED: START_FUSED(a)
    a(f"s_sub_u32 s46, s{S_TOK}, {32*8192}")
    a(f"s_xor_b32 s47, s{S_TDST}, 16384")
    for x in token_dma("s46", "s47"): a(x)
    a(f"s_cmp_ge_u32 s{S_W}, 2")
    a(f"s_cbranch_scc1 {n}_t0")
    a("v_lshlrev_b32 v40, 4, v0")
    a(f"v_add_u32 v40, {L_MEM}, v40")
    for u in range(5):
        a(f"ds_write_b128 v40, {vr(92+4*u,4)} offset:{u*2048}")
    a.lab(f"{n}_t0")
    a("s_waitcnt lgkmcnt(0)")
    zero(a, KACC, 20)
    a(f"v_mov_b64 {vr(KOP,2)}, -1")
    a(f"v_mov_b64 {vr(KOP+2,2)}, -1")
    a("s_waitcnt vmcnt(0) lgkmcnt(0)")
    a("s_barrier")
    if STAMPS:
        a("s_memrealtime s[62:63]")
        for i in range(16): a(f"s_mov_b32 s{70+i}, 0")
        a("s_memtime s[64:65]")
        a("s_waitcnt lgkmcnt(0)")
    def stampfn(i):
        if not STAMPS or (i and not STAMP_FINE): return
        a("s_memtime s[66:67]")
        a("s_waitcnt lgkmcnt(0)")
        a("s_sub_u32 s68, s66, s64")
        a(f"s_add_u32 s{70+i}, s{70+i}, s68")
        a("s_mov_b32 s64, s66")
    if TLF: TLF(a, 2, 104)
    step(a, last=False, stampfn=stampfn, loop=f"{n}_loop")
    step(a, last=True)
    if TLF: TLF(a, 3, 104)
    if STAMPS:
        a("s_memrealtime s[66:67]")
        a("s_waitcnt lgkmcnt(0)")
        a("s_sub_u32 s82, s66, s62")
        for i in range(16): a(f"v_mov_b32 v{30+i}, s{70+i}")
        a(f"s_lshl_b32 s44, s{S_X}, 5")
        a(f"s_add_u32 s44, s44, s{S_R}")
        a(f"s_lshl_b32 s44, s44, 2")
        a(f"s_add_u32 s44, s44, s{S_W}")
        a("s_lshl_b32 s44, s44, 6")
        a(f"s_add_u32 s44, s44, {WS_FLAG + 65536}")
        a("v_mov_b32 v44, 0")
        a("v_cmp_eq_u32 vcc, 0, v1")
        a("s_and_saveexec_b64 s[46:47], vcc")
        for i in range(4):
            a(f"buffer_store_dwordx4 {vr(30+4*i,4)}, v44, s[8:11], s44 offen offset:{16*i}")
        a("s_mov_b64 exec, -1")
    a("s_waitcnt vmcnt(0)")

PARITY = None
EXT_PROBE = False
WAIT_TOKENS = None
WAIT_INIT = None
START_FUSED = None
TLF = None
TLSTEP = False
STAMP_FINE = False

def assign_role(a, n):
    a("v_lshrrev_b32 v1, 6, v0")
    a(f"s_load_dwordx2 s[60:61], s[0:1], {KA['dbg']}")
    a("s_getreg_b32 s5, hwreg(HW_REG_XCC_ID)")
    a("v_readfirstlane_b32 s4, v1")
    a("s_and_b32 s5, s5, 7")
    a("s_waitcnt lgkmcnt(0)")
    a("v_cmp_eq_u32 vcc, 0, v0")
    a("s_and_saveexec_b64 s[44:45], vcc")
    a(f"s_cbranch_execz {n}_tk")
    a("s_lshl_b32 s46, s5, 2")
    a("v_mov_b32 v2, s46")
    a("v_mov_b32 v3, 1")
    a("global_atomic_add v4, v2, v3, s[60:61] sc0")
    a("s_waitcnt vmcnt(0)")
    a("v_mov_b32 v5, 0")
    a("ds_write_b32 v5, v4")
    a("s_waitcnt lgkmcnt(0)")
    a.lab(f"{n}_tk")
    a("s_mov_b64 exec, s[44:45]")
    a("s_barrier")
    a("v_mov_b32 v5, 0")
    a("ds_read_b32 v4, v5")
    a("s_waitcnt lgkmcnt(0)")
    a("v_readfirstlane_b32 s6, v4")
    a("s_barrier")

def k2_kernel(a, name="k2_kernel"):
    kernel_header(a, name)
    a("s_cmp_ge_u32 s2, 256")
    a(f"s_cbranch_scc1 {name}_end")
    assign_role(a, name)
    a("s_cmp_ge_u32 s5, 2")
    a(f"s_cbranch_scc1 {name}_end")
    a("s_cmp_ge_u32 s6, 32")
    a(f"s_cbranch_scc1 {name}_end")
    role_chain(a, name)
    a.lab(f"{name}_end")
    a("s_endpgm")
```

```python
class Asm:
    def __init__(self):
        self.l = []
        self.n = 0
    def __call__(self, s=""):
        for line in s.split("\n"):
            self.l.append(line)
    def lab(self, name):
        self.l.append(f"{name}:")
    def uid(self, p="L"):
        self.n += 1
        return f"{p}_{self.n}"
    def text(self):
        out = []
        for x in self.l:
            x = x.strip()
            if not x:
                continue
            out.append(x if x.endswith(":") or x.startswith((".", ";")) else "    " + x)
        return "\n".join(out) + "\n"

def vr(b, n=1):
    return f"v{b}" if n == 1 else f"v[{b}:{b+n-1}]"
def ar(b, n=1):
    return f"a{b}" if n == 1 else f"a[{b}:{b+n-1}]"
def sr(b, n=1):
    return f"s{b}" if n == 1 else f"s[{b}:{b+n-1}]"

KA = dict(x=0, mem0=8, wq=16, wk=24, wv=32, wo=40, seg=48, bx=56, bwqkv=64, bwo=72, out=80, dbg=88, ws=96)

MiB = 1 << 20
WS_QF = 0 * MiB
WS_KF = 16 * MiB
WS_VF = 32 * MiB
WS_OF = 48 * MiB
WS_KM = 64 * MiB
WS_VM = 68 * MiB
WS_BQ = 72 * MiB
WS_BK = 76 * MiB
WS_BVT = 80 * MiB
WS_BO = 84 * MiB
WS_RING = 88 * MiB
WS_FLAG = 96 * MiB
WS_SIZE = 256 * MiB

SRD3 = 0x20000

def srd(a, d, base, nbytes):
    a(f"s_mov_b32 s{d}, s{base}")
    a(f"s_mov_b32 s{d+1}, s{base+1}")
    a(f"s_mov_b32 s{d+2}, {hex(nbytes)}")
    a(f"s_mov_b32 s{d+3}, {hex(SRD3)}")

def kernel_header(a, name):
    a(f".globl {name}")
    a(".p2align 8")
    a(f".type {name},@function")
    a.lab(name)

def kernel_desc(name, vgpr=512, acc=256, sgpr=102):
    return f""".amdhsa_kernel {name}
  .amdhsa_next_free_vgpr {vgpr}
  .amdhsa_next_free_sgpr {sgpr}
  .amdhsa_accum_offset {acc}
  .amdhsa_group_segment_fixed_size 0
  .amdhsa_kernarg_size 104
  .amdhsa_user_sgpr_count 2
  .amdhsa_user_sgpr_kernarg_segment_ptr 1
  .amdhsa_system_sgpr_workgroup_id_x 1
.end_amdhsa_kernel
"""
```

```python
from core import *

V_XD = 2
V_WD = 4
V_XR = 10
V_WR = 14
SET = [(32, 48), (68, 84)]
V_T = 104
BUF = 32768
OUTFL = ''
XFL = ''

STAMP = False
def stamp(a, i):
    if STAMP:
        a(f"s_memtime s[{60+2*i}:{61+2*i}]")

def gemm_setup(a, TM, TN):
    BM = 64 * TM; CW = 8 * TN; NP = CW // 8; WB = BM * 64; RB = CW * 16
    a("v_and_b32 v1, 63, v0")
    a("v_lshrrev_b32 v20, 2, v1")
    a("v_and_b32 v21, 3, v1")
    a("v_lshrrev_b32 v22, 4, v1")
    a("v_xor_b32 v23, v21, v22")
    a("v_mul_u32_u24 v24, 1280, v20")
    a(f"v_lshl_add_u32 v{V_XD}, v23, 4, v24")
    for i in range(NP):
        a(f"v_add_u32 v20, {64*i}, v1")
        if CW == 32:
            a("v_lshrrev_b32 v21, 5, v20")
            a("v_and_b32 v22, 31, v20")
            a("v_and_b32 v23, 3, v21")
            a("v_lshlrev_b32 v23, 2, v23")
        else:
            a("s_mov_b32 s30, 0xCCCCCCCD")
            a("v_mul_hi_u32 v21, v20, s30")
            a("v_lshrrev_b32 v21, 5, v21")
            a("v_mul_u32_u24 v22, 40, v21")
            a("v_sub_u32 v22, v20, v22")
            a("v_and_b32 v23, 2, v21")
            a("v_lshlrev_b32 v23, 1, v23")
        a("v_xor_b32 v22, v22, v23")
        a("v_mul_lo_u32 v21, v21, s18")
        a(f"v_lshl_add_u32 v{V_WD+i}, v22, 4, v21")
    a("s_and_b32 s30, s4, 1")
    a(f"s_mul_i32 s30, s30, {32*TM*64}")
    a("v_and_b32 v20, 31, v1")
    a("v_lshrrev_b32 v21, 5, v1")
    a("v_bfe_u32 v22, v20, 2, 2")
    a("v_lshlrev_b32 v20, 6, v20")
    a("v_add_u32 v20, s30, v20")
    for k in range(2):
        a(f"v_add_u32 v23, {2*k}, v21")
        a("v_xor_b32 v23, v23, v22")
        a(f"v_lshl_add_u32 v{V_XR+2*k}, v23, 4, v20")
        a(f"v_add_u32 v{V_XR+2*k+1}, 0x10000, v{V_XR+2*k}")
    a("s_lshr_b32 s31, s4, 1")
    a(f"s_mul_i32 s31, s31, {4*TN}")
    a("v_bfe_u32 v20, v1, 2, 2")
    a("v_and_b32 v21, 3, v1")
    a("v_bfe_u32 v22, v1, 4, 1")
    a("v_lshrrev_b32 v23, 5, v1")
    a("v_lshl_add_u32 v24, v23, 3, v20")
    a(f"v_mul_u32_u24 v24, {RB}, v24")
    a(f"v_add_u32 v24, {WB}, v24")
    a("v_and_b32 v25, 1, v21")
    a("v_lshl_add_u32 v24, v25, 3, v24")
    a("v_lshrrev_b32 v25, 1, v21")
    a("v_lshl_add_u32 v25, v22, 1, v25")
    a("v_add_u32 v25, s31, v25")
    if CW == 32:
        a("v_lshlrev_b32 v26, 2, v20")
    else:
        a("v_and_b32 v26, 2, v20")
        a("v_lshlrev_b32 v26, 1, v26")
    for nt in range(TN):
        a(f"v_add_u32 v27, {4*nt}, v25")
        a("v_xor_b32 v27, v27, v26")
        a(f"v_lshl_add_u32 v{V_WR+2*nt}, v27, 4, v24")
        a(f"v_add_u32 v{V_WR+2*nt+1}, 0x10000, v{V_WR+2*nt}")

def dma_list(TM, TN):
    BM = 64 * TM; NP = TN
    return [("x", u) for u in range(BM // 64)] + [("w", i) for i in range(NP)]

def emit_dma(a, TM, TN, d, buf):
    if d[0] == "x":
        u = d[1]
        a(f"s_add_u32 m0, s39, {buf*BUF + u*1024}")
        a(f"s_add_u32 s38, s33, {u*16*1280}")
        a(f"buffer_load_dwordx4 v{V_XD}, s[8:11], s38 offen {XFL} lds")
    else:
        i = d[1]
        a(f"s_add_u32 m0, s40, {buf*BUF + i*1024}")
        a(f"buffer_load_dwordx4 v{V_WD + i}, s[12:15], s34 offen lds")

def frag_reads(TM, TN, kap, st, buf):
    CW = 8 * TN; RB = CW * 16
    xb, wb = SET[st]
    h = buf >> 1; off = (buf & 1) * BUF
    L = []
    for mt in range(TM):
        L.append(f"ds_read_b128 {vr(xb+4*mt,4)}, v{V_XR+2*kap+h} offset:{off + mt*2048}")
    for nt in range(TN):
        for u in range(2):
            L.append(f"ds_read_b64_tr_b16 {vr(wb+4*nt+2*u,2)}, v{V_WR+2*nt+h} offset:{off + (16*kap+4*u)*RB}")
    return L

def mfmas(TM, TN, st, swap):
    xb, wb = SET[st]
    L = []
    for mt in range(TM):
        for nt in range(TN):
            acc = ar((mt*TN+nt)*16, 16)
            x = vr(xb+4*mt, 4); w = vr(wb+4*nt, 4)
            s0, s1 = (x, w) if swap else (w, x)
            L.append(f"v_mfma_f32_32x32x16_bf16 {acc}, {s0}, {s1}, {acc}")
    return L

def interleave(a, mf, others):
    n = len(mf); k = len(others); j = 0
    for i, m in enumerate(mf):
        a(m)
        tgt = (k * (i + 1)) // n
        while j < min(tgt, k):
            o = others[j]; j += 1
            o() if callable(o) else a(o)
    while j < k:
        o = others[j]; j += 1
        o() if callable(o) else a(o)

def merge(x, y):
    out = []; i = j = 0
    while i < len(x) or j < len(y):
        if j >= len(y) or (i < len(x) and i * len(y) <= j * len(x)):
            out.append(x[i]); i += 1
        else:
            out.append(y[j]); j += 1
    return out

def gemm_main(a, TM, TN, swap):
    BM = 64 * TM; CW = 8 * TN; WB = BM * 64
    name = a.uid("G")
    stamp(a, 1)
    dl = dma_list(TM, TN); ND = len(dl)
    a(f"s_mul_i32 s33, s4, {(BM//4)*1280}")
    a("s_add_u32 s33, s33, s16")
    a("s_lshl_b32 s37, s18, 3")
    a("s_mul_i32 s34, s4, s37")
    a("s_add_u32 s34, s34, s17")
    a(f"s_mul_i32 s39, s4, {(BM//64)*1024}")
    a(f"s_mul_i32 s40, s4, {8*CW*16}")
    a(f"s_add_u32 s40, s40, {WB}")
    a("s_lshl_b32 s41, s18, 5")
    def adv():
        a("s_add_u32 s33, s33, 64")
        a("s_add_u32 s34, s34, s41")
    for b in range(3):
        for d in dl:
            emit_dma(a, TM, TN, d, b)
        adv()
    for i in range(TM*TN*16):
        a(f"v_accvgpr_write_b32 a{i}, 0")
    a(f"s_waitcnt vmcnt({2*ND})")
    a("s_barrier")
    stamp(a, 2)
    for r in frag_reads(TM, TN, 0, 0, 0):
        a(r)
    a("s_mov_b32 s42, 0")
    a.lab(f"{name}_loop")
    n0 = (ND + 1) // 2
    for u in range(4):
        if u == 1:
            a("s_cmp_eq_u32 s42, 4")
            a("s_cselect_b32 s10, 0, s10")
            a("s_cselect_b32 s14, 0, s14")
        tb = (u + 3) % 4
        dm = [(lambda d=d, tb=tb: emit_dma(a, TM, TN, d, tb)) for d in dl]
        a("s_waitcnt lgkmcnt(0)")
        interleave(a, mfmas(TM, TN, 0, swap), merge(frag_reads(TM, TN, 1, 1, u), dm[:n0]))
        a("s_waitcnt lgkmcnt(0)")
        mf = mfmas(TM, TN, 1, swap)
        for m in mf[:3]:
            a(m)
        a(f"s_waitcnt vmcnt({ND + n0})")
        a("s_barrier")
        interleave(a, mf[3:], merge(frag_reads(TM, TN, 0, 0, (u + 1) % 4), dm[n0:]))
        adv()
    a("s_add_u32 s42, s42, 1")
    a("s_cmp_lt_u32 s42, 5")
    a(f"s_cbranch_scc1 {name}_loop")
    a("s_waitcnt vmcnt(0) lgkmcnt(0)")
    a("s_nop 15")
    a("s_nop 7")
    a("s_barrier")
    stamp(a, 3)

def cvt_tile(a, acc, dst, scale=None):
    for j in range(16):
        a(f"v_accvgpr_read_b32 v{V_T+j}, a{acc+j}")
    if scale is not None:
        for j in range(16):
            a(f"v_mul_f32 v{V_T+j}, {scale}, v{V_T+j}")
    for j in range(8):
        a(f"v_cvt_pk_bf16_f32 v{dst+j}, v{V_T+2*j}, v{V_T+2*j+1}")

def epi_frag(a, TM, TN, st_flags="sc1"):
    a("s_and_b32 s30, s4, 1")
    a(f"s_mul_i32 s30, s30, {TM*32*8192}")
    a("s_lshr_b32 s31, s4, 1")
    a("s_lshl_b32 s31, s31, 13")
    a("s_add_u32 s30, s30, s31")
    a("s_add_u32 s30, s30, s24")
    a("v_and_b32 v1, 63, v0")
    a("v_lshlrev_b32 v2, 4, v1")
    k = 0
    for mt in range(TM):
        for nt in range(TN):
            d = 128 + 8 * (k % 4); k += 1
            cvt_tile(a, (mt*TN+nt)*16, d)
            a(f"s_add_u32 s31, s30, {mt*32*8192 + nt*2048}")
            a(f"buffer_store_dwordx4 {vr(d,4)}, v2, s[20:23], s31 offen {st_flags}")
            a(f"buffer_store_dwordx4 {vr(d+4,4)}, v2, s[20:23], s31 offen offset:1024 {st_flags}")

def copy_out(a, nchunks, vsrc_lds, emit_store):
    rounds = nchunks // 256
    for r0 in range(0, rounds, 4):
        n = min(4, rounds - r0)
        for i in range(n):
            a(f"ds_read_b128 {vr(128+4*i,4)}, v{vsrc_lds} offset:{(r0+i)*4096 % 65536}" if (r0+i)*4096 < 65536 else
              f"ds_read_b128 {vr(128+4*i,4)}, v{vsrc_lds+1} offset:{(r0+i)*4096 - 65536}")
        for i in range(n):
            a(f"s_waitcnt lgkmcnt({n-1-i})")
            emit_store(r0 + i, 128 + 4*i)

def epi_bqk(a, TM, TN, st_flags="sc1"):
    HS = 2048 * 48; LH = 128 * 48
    a("s_and_b32 s30, s4, 1")
    a(f"s_mul_i32 s30, s30, {32*TM*48}")
    a("s_lshr_b32 s31, s4, 1")
    a(f"s_mul_i32 s31, s31, {8*LH}")
    a("s_add_u32 s30, s30, s31")
    a("v_and_b32 v1, 31, v0")
    a("v_bfe_u32 v5, v0, 5, 1")
    a("v_mul_u32_u24 v1, 48, v1")
    a("v_add_u32 v1, s30, v1")
    a("v_lshl_add_u32 v2, v5, 3, v1")
    a(f"v_mul_u32_u24 v6, {LH-32}, v5")
    a("v_add_u32 v3, v1, v6")
    a(f"v_mul_u32_u24 v6, {LH}, v5")
    a("v_add_u32 v4, v1, v6")
    a("v_mov_b32 v8, 0")
    a("v_mov_b32 v9, 0")
    k = 0
    for mt in range(TM):
        for nt in range(TN):
            d = 128 + 8 * (k % 4); k += 1
            cvt_tile(a, (mt*TN+nt)*16, d, scale="s26")
            for q in range(4):
                n0 = 32*nt + 8*q
                h0, d0 = divmod(n0, 20); h1, d1 = divmod(n0+4, 20)
                v = 2 if h0 == h1 else 3
                a(f"ds_write_b64 v{v}, {vr(d+2*q,2)} offset:{h0*LH + d0*2 + mt*1536}")
        for xi in range(4):
            a(f"ds_write_b64 v4, v[8:9] offset:{2*xi*LH + 40 + mt*1536}")
    a("s_waitcnt lgkmcnt(0)")
    a("s_barrier")
    a("v_lshlrev_b32 v10, 4, v0")
    a("v_add_u32 v11, 0x10000, v10")
    a("s_mul_i32 s30, s25, 48")
    a("s_add_u32 s30, s30, s24")
    for p in range(3):
        a(f"v_add_u32 v12, {256*p}, v0")
        a("v_cmp_le_u32 vcc, 384, v12")
        a(f"v_add_u32 v13, {(HS//16) - 384}, v12")
        a("s_nop 0")
        a("v_cndmask_b32 v12, v12, v13, vcc")
        a(f"v_lshlrev_b32 v{14+p}, 4, v12")
    def st(r, reg):
        a(f"s_add_u32 s31, s30, {(r//3)*2*HS}")
        a(f"buffer_store_dwordx4 {vr(reg,4)}, v{14 + r%3}, s[20:23], s31 offen {st_flags}")
    copy_out(a, 16*384, 10, st)

def epi_bv(a, TM, TN, st_flags="sc1"):
    P = 272
    a("s_and_b32 s30, s4, 1")
    a(f"s_mul_i32 s30, s30, {32*TM*2}")
    a("s_lshr_b32 s31, s4, 1")
    a(f"s_mul_i32 s31, s31, {32*TN*P}")
    a("s_add_u32 s30, s30, s31")
    a("v_and_b32 v1, 31, v0")
    a("v_bfe_u32 v5, v0, 5, 1")
    a(f"v_mul_u32_u24 v1, {P}, v1")
    a("v_add_u32 v1, s30, v1")
    a("v_lshl_add_u32 v2, v5, 3, v1")
    k = 0
    for mt in range(TM):
        for nt in range(TN):
            d = 128 + 8 * (k % 4); k += 1
            cvt_tile(a, (mt*TN+nt)*16, d)
            for q in range(4):
                a(f"ds_write_b64 v2, {vr(d+2*q,2)} offset:{nt*32*P + mt*64 + q*16}")
    a("s_waitcnt lgkmcnt(0)")
    a("s_barrier")
    a("v_lshrrev_b32 v12, 4, v0")
    a("v_and_b32 v13, 15, v0")
    a(f"v_mul_u32_u24 v10, {P}, v12")
    a("v_lshl_add_u32 v10, v13, 4, v10")
    a("v_lshlrev_b32 v14, 12, v12")
    a("v_lshl_add_u32 v14, v13, 4, v14")
    a("s_lshl_b32 s30, s25, 1")
    a("s_add_u32 s30, s30, s24")
    a(f"v_add_u32 v11, {10*16*P}, v10")
    for r0 in range(0, 20, 4):
        for i in range(4):
            r = r0 + i
            a(f"ds_read_b128 {vr(128+4*i,4)}, v{10 if r < 10 else 11} offset:{(r % 10)*16*P}")
        for i in range(4):
            r = r0 + i
            a(f"s_waitcnt lgkmcnt({3-i})")
            a(f"s_add_u32 s31, s30, {r*16*4096}")
            a(f"buffer_store_dwordx4 {vr(128+4*i,4)}, v14, s[20:23], s31 offen {st_flags}")

def epi_out(a, TM, TN):
    a("s_and_b32 s30, s4, 1")
    a(f"s_mul_i32 s30, s30, {32*TM}")
    a("s_add_u32 s30, s30, s25")
    a("s_mul_i32 s30, s30, 2560")
    a("s_lshr_b32 s31, s4, 1")
    a(f"s_mul_i32 s31, s31, {32*TN*2}")
    a("s_add_u32 s30, s30, s31")
    a("s_add_u32 s30, s30, s24")
    a("v_and_b32 v1, 31, v0")
    a("v_bfe_u32 v5, v0, 5, 1")
    a("v_mul_u32_u24 v1, 2560, v1")
    a("v_lshl_add_u32 v2, v5, 4, v1")
    k = 0
    for mt in range(TM):
        for nt in range(TN):
            d = 128 + 8 * (k % 4); k += 1
            cvt_tile(a, (mt*TN+nt)*16, d)
            a("s_nop 1")
            a(f"v_permlane32_swap_b32 v{d}, v{d+2}")
            a(f"v_permlane32_swap_b32 v{d+1}, v{d+3}")
            a(f"v_permlane32_swap_b32 v{d+4}, v{d+6}")
            a(f"v_permlane32_swap_b32 v{d+5}, v{d+7}")
            a(f"s_add_u32 s31, s30, {mt*32*2560}")
            a(f"buffer_store_dwordx4 {vr(d,4)}, v2, s[20:23], s31 offen offset:{nt*64} {OUTFL}")
            a(f"buffer_store_dwordx4 {vr(d+4,4)}, v2, s[20:23], s31 offen offset:{nt*64+32} {OUTFL}")
```

```python
import re
REG = re.compile(r"\b([vas])(\d+)\b|\b([vas])\[(\d+):(\d+)\]")
def regs(op):
    out = []
    for m in REG.finditer(op):
        if m.group(1):
            out.append((m.group(1), int(m.group(2))))
        else:
            out += [(m.group(3), i) for i in range(int(m.group(4)), int(m.group(5)) + 1)]
    return out
TRANS = ("v_exp_f32", "v_log_f32", "v_rcp_f32", "v_rsq_f32", "v_sqrt_f32", "v_sin_f32", "v_cos_f32")
def passes(op):
    if "32x32x16" in op or "32x32x8" in op or "smfmac_f32_32x32" in op: return 8
    return 4
class I: pass
def parse(line):
    line = line.split(";")[0].strip()
    if not line or line.endswith(":") or line.startswith("."): return None
    p = line.split(None, 1)
    i = I(); i.op = p[0]; i.txt = line
    ops = [x.strip() for x in re.split(r",(?![^\[]*\])", p[1])] if len(p) > 1 else []
    i.ops = ops
    op = i.op
    i.kind = "salu"
    i.w = []; i.r = []
    R = lambda k: regs(ops[k]) if k < len(ops) else []
    allr = [x for o in ops for x in regs(o)]
    if op.startswith(("v_mfma", "v_smfmac")):
        i.kind = "mfma"; i.w = R(0); i.A = R(1); i.B = R(2); i.C = R(3) if op.startswith("v_mfma") else R(0)
        i.idx = R(3) if op.startswith("v_smfmac") else []
        i.r = i.A + i.B + i.C + i.idx; i.p = passes(op)
    elif op.startswith("v_"):
        i.kind = "valu"
        if op.startswith("v_cmp"):
            i.w = R(0) if not ops[0].startswith("vcc") else [("s", "vcc")]
            i.r = [x for o in ops[1:] for x in regs(o)]
        elif op.startswith(("v_readfirstlane", "v_readlane")):
            i.w = R(0); i.r = [x for o in ops[1:] for x in regs(o)]
        elif op.startswith("v_permlane") and "swap" in op:
            i.w = R(0) + R(1); i.r = R(0) + R(1)
        else:
            i.w = R(0); i.r = [x for o in ops[1:] for x in regs(o)]
            if op.startswith(("v_fmac", "v_pk_fmac")) or "dpp" in line: i.r += R(0)
            if "vcc" in ops[1:] or op.startswith(("v_cndmask_b32",)) and len(ops) == 4 and ops[3].startswith("vcc"): i.r.append(("s", "vcc"))
            if op.startswith(("v_add_co", "v_addc_co", "v_sub_co")): i.w.append(("s", "vcc"))
    elif op.startswith("ds_"):
        i.kind = "ds"
        if op.startswith("ds_read"):
            i.w = R(0); i.r = R(1)
        else:
            i.r = allr
    elif op.startswith(("buffer_", "global_")):
        i.kind = "vmem"
        if "load" in op and " lds" not in line:
            i.w = R(0); i.r = [x for o in ops[1:] for x in regs(o)]
        elif "atomic" in op and "sc0" in line:
            i.w = R(0); i.r = allr
        else:
            i.r = allr
        i.wide = ("store" in op) and ("x4" in op or "x3" in op)
        i.data = R(0) if op.startswith("buffer_store") else (R(1) if op.startswith("global_store") else [])
    else:
        i.kind = "salu"
    i.states = 1
    if op == "s_nop": i.states = int(ops[0], 0) + 1
    return i
def check(text, verbose=True, window=24):
    ins = [x for x in (parse(l) for l in text.split("\n")) if x]
    errs = []
    t = 0; pipe = 0
    for c in ins:
        if c.kind == "mfma":
            t = max(t, pipe); pipe = t + c.p
        c.t = t
        t += c.states
    for n, c in enumerate(ins):
        for m in range(n - 1, max(-1, n - window - 1), -1):
            p = ins[m]
            dist = c.t - p.t - p.states
            def need(k, why):
                if dist < k: errs.append(f"need {k} have {dist}: [{p.txt}] -> [{c.txt}] ({why})")
            pw = set(p.w)
            if p.kind == "valu":
                vw = {x for x in pw if x[0] in "va"}
                if c.kind == "mfma" and vw & set(c.r): need(2, "VALU->MFMA")
                if c.op.startswith("v_permlane") and vw & set(c.r): need(2, "VALU->permlane")
                if "dpp" in c.txt and vw & set(c.r): need(2, "VALU->DPP")
                if c.op.startswith(("v_readfirstlane", "v_readlane")) and vw & set(c.r): need(1, "VALU->readlane")
                if p.op.startswith(TRANS) and c.kind in ("valu", "mfma") and not c.op.startswith(TRANS) and vw & set(c.r): need(1, "trans->use")
                sw = {x for x in pw if x[0] == "s"}
                if sw and c.kind == "valu" and sw & set(c.r): need(2, "VALU sgpr->VALU")
                if sw and c.kind == "vmem" and sw & set(c.r): need(5, "VALU sgpr->VMEM")
            if p.kind == "mfma":
                D = set(p.w)
                big = 8 if p.p == 4 else 12
                if c.kind == "mfma":
                    if D & (set(c.A) | set(c.B) | set(c.idx)): need(big, "MFMA D->A/B")
                    if D & set(c.C) and not (set(c.C) == D and c.p == p.p): need(6 if p.p == 4 else 10, "MFMA D->C partial")
                elif c.kind in ("valu", "ds", "vmem"):
                    if D & (set(c.r) | set(c.w)): need(big, "MFMA D->VALU/mem")
                if c.kind == "valu" and set(p.C) & set(c.w) and not (D & set(c.w)): need(3 if p.p == 4 else 7, "MFMA C WAR")
            if p.kind == "vmem" and getattr(p, "wide", False) and set(p.data) & set(c.w):
                need(2 if c.kind == "valu" else 1, "wide store data WAR")
            if dist >= 20: break
    if verbose:
        for e in errs[:60]: print("HAZ", e)
        print(f"hazard check: {len(ins)} instrs, {len(errs)} problems")
    return errs
if __name__ == "__main__":
    import sys
    check(open(sys.argv[1]).read())
```

```python
from core import *
from gemm import *

CB = (20 ** -0.5) * 1.4426950408889634
import struct
def f2u(x): return struct.unpack("<I", struct.pack("<f", x))[0]

def task_apre(a, done):
    a("s_mul_hi_u32 s6, s5, 0x5555556")
    a("s_mul_i32 s7, s6, 48")
    a("s_sub_u32 s7, s5, s7")
    task_apre_rc(a, done)

def task_apre_rc(a, done):
    n = a.uid("AP")
    a("s_lshr_b32 s27, s7, 4")
    a("s_and_b32 s7, s7, 15")
    a(f"s_load_dwordx2 s[8:9], s[0:1], {KA['x']}")
    a(f"s_load_dwordx2 s[20:21], s[0:1], {KA['ws']}")
    a(f"s_cmp_eq_u32 s27, 0")
    a(f"s_cselect_b32 s28, {KA['wk']}, {KA['wv']}")
    a(f"s_cmp_eq_u32 s27, 2")
    a(f"s_cselect_b32 s28, {KA['wq']}, s28")
    a(f"s_load_dwordx2 s[12:13], s[0:1], s28")
    a(f"s_mov_b32 s24, {WS_KF}")
    a(f"s_cmp_eq_u32 s27, 1")
    a(f"s_cselect_b32 s24, {WS_VF}, s24")
    a(f"s_cmp_eq_u32 s27, 2")
    a(f"s_cselect_b32 s24, {WS_QF}, s24")
    a("s_mul_i32 s16, s6, 327680")
    a("s_lshl_b32 s17, s7, 9")
    a("s_mov_b32 s18, 8192")
    a("s_lshl_b32 s29, s6, 21")
    a("s_add_u32 s24, s24, s29")
    a("s_lshl_b32 s29, s7, 14")
    a("s_add_u32 s24, s24, s29")
    a("s_waitcnt lgkmcnt(0)")
    a(f"s_mov_b32 s10, {2048*1280}")
    a(f"s_mov_b32 s11, {hex(SRD3)}")
    a(f"s_mov_b32 s14, {640*8192}")
    a(f"s_mov_b32 s15, {hex(SRD3)}")
    a(f"s_mov_b32 s22, {hex(WS_SIZE)}")
    a(f"s_mov_b32 s23, {hex(SRD3)}")
    gemm_setup(a, 4, 4)
    a("s_cmp_eq_u32 s27, 1")
    a(f"s_cbranch_scc1 {n}_v")
    gemm_main(a, 4, 4, False)
    a(f"s_branch {n}_epi")
    a.lab(f"{n}_v")
    gemm_main(a, 4, 4, True)
    a.lab(f"{n}_epi")
    epi_frag(a, 4, 4)
    a(f"s_branch {done}")

def task_apre_half(a, done):
    n = a.uid("AH")
    a("s_lshr_b32 s27, s7, 4")
    a("s_and_b32 s7, s7, 15")
    a(f"s_load_dwordx2 s[8:9], s[0:1], {KA['x']}")
    a(f"s_load_dwordx2 s[20:21], s[0:1], {KA['ws']}")
    a(f"s_cmp_eq_u32 s27, 0")
    a(f"s_cselect_b32 s28, {KA['wk']}, {KA['wv']}")
    a(f"s_load_dwordx2 s[12:13], s[0:1], s28")
    a(f"s_mov_b32 s24, {WS_KF}")
    a(f"s_cmp_eq_u32 s27, 1")
    a(f"s_cselect_b32 s24, {WS_VF}, s24")
    a("s_mul_i32 s16, s6, 163840")
    a("s_lshl_b32 s17, s7, 9")
    a("s_mov_b32 s18, 8192")
    a("s_lshl_b32 s29, s6, 20")
    a("s_add_u32 s24, s24, s29")
    a("s_lshl_b32 s29, s7, 14")
    a("s_add_u32 s24, s24, s29")
    a("s_waitcnt lgkmcnt(0)")
    a(f"s_mov_b32 s10, {2048*1280}")
    a(f"s_mov_b32 s11, {hex(SRD3)}")
    a(f"s_mov_b32 s14, {640*8192}")
    a(f"s_mov_b32 s15, {hex(SRD3)}")
    a(f"s_mov_b32 s22, {hex(WS_SIZE)}")
    a(f"s_mov_b32 s23, {hex(SRD3)}")
    gemm_setup(a, 2, 4)
    a("s_cmp_eq_u32 s27, 1")
    a(f"s_cbranch_scc1 {n}_v")
    gemm_main(a, 2, 4, False)
    a(f"s_branch {n}_epi")
    a.lab(f"{n}_v")
    gemm_main(a, 2, 4, True)
    a.lab(f"{n}_epi")
    epi_frag(a, 2, 4)
    a(f"s_branch {done}")

def task_bqkv(a, done):
    n = a.uid("BQ")
    a("s_mul_hi_u32 s6, s5, 0x2AAAAAAB")
    a("s_mul_i32 s7, s6, 6")
    a("s_sub_u32 s7, s5, s7")
    a(f"s_load_dwordx2 s[8:9], s[0:1], {KA['bx']}")
    a(f"s_load_dwordx2 s[12:13], s[0:1], {KA['bwqkv']}")
    a(f"s_load_dwordx2 s[20:21], s[0:1], {KA['ws']}")
    a("s_lshr_b32 s27, s7, 1")
    a("s_and_b32 s28, s7, 1")
    a("s_mul_i32 s16, s6, 163840")
    a("s_mul_i32 s17, s7, 640")
    a("s_mov_b32 s18, 3840")
    a("s_lshl_b32 s25, s6, 7")
    a("s_waitcnt lgkmcnt(0)")
    a(f"s_mov_b32 s10, {2048*1280}")
    a(f"s_mov_b32 s11, {hex(SRD3)}")
    a(f"s_mov_b32 s14, {640*3840}")
    a(f"s_mov_b32 s15, {hex(SRD3)}")
    a(f"s_mov_b32 s22, {hex(WS_SIZE)}")
    a(f"s_mov_b32 s23, {hex(SRD3)}")
    gemm_setup(a, 2, 5)
    a("s_cmp_eq_u32 s27, 2")
    a(f"s_cbranch_scc1 {n}_v")
    gemm_main(a, 2, 5, False)
    a(f"s_mul_i32 s24, s28, {16*2048*48}")
    a("s_cmp_eq_u32 s27, 0")
    a(f"s_mov_b32 s29, {WS_BK}")
    a(f"s_cselect_b32 s29, {WS_BQ}, s29")
    a(f"s_mov_b32 s26, 1.0")
    a(f"s_cselect_b32 s26, {hex(f2u(CB))}, s26")
    a("s_add_u32 s24, s24, s29")
    epi_bqk(a, 2, 5)
    a(f"s_branch {done}")
    a.lab(f"{n}_v")
    gemm_main(a, 2, 5, True)
    a(f"s_mul_i32 s24, s28, {320*4096}")
    a(f"s_add_u32 s24, s24, {WS_BVT}")
    epi_bv(a, 2, 5)
    a(f"s_branch {done}")

def task_bout(a, done):
    a("s_lshr_b32 s6, s5, 1")
    a("s_and_b32 s7, s5, 1")
    a(f"s_load_dwordx2 s[8:9], s[0:1], {KA['ws']}")
    a(f"s_load_dwordx2 s[12:13], s[0:1], {KA['bwo']}")
    a(f"s_load_dwordx2 s[20:21], s[0:1], {KA['out']}")
    a("s_mul_i32 s16, s6, 163840")
    a(f"s_add_u32 s16, s16, {WS_BO}")
    a("s_mul_i32 s17, s7, 640")
    a("s_mov_b32 s18, 1280")
    a("s_lshl_b32 s25, s6, 7")
    a("s_waitcnt lgkmcnt(0)")
    a(f"s_mov_b32 s10, {hex(WS_SIZE)}")
    a(f"s_mov_b32 s11, {hex(SRD3)}")
    a(f"s_mov_b32 s14, {640*1280}")
    a(f"s_mov_b32 s15, {hex(SRD3)}")
    a(f"s_mov_b32 s22, {2048*2560}")
    a(f"s_mov_b32 s23, {hex(SRD3)}")
    gemm_setup(a, 2, 5)
    import gemm
    gemm.XFL = "sc1"
    gemm_main(a, 2, 5, False)
    gemm.XFL = ""
    a("s_mul_i32 s24, s7, 640")
    a("s_add_u32 s24, s24, 1280")
    epi_out(a, 2, 5)
    a(f"s_branch {done}")

def k1_kernel(a, name="k1_kernel"):
    kernel_header(a, name)
    a("s_cmp_ge_u32 s2, 480")
    a(f"s_cbranch_scc1 {name}_end")
    stamp(a, 0)
    a("s_memrealtime s[76:77]")
    a("v_lshrrev_b32 v1, 6, v0")
    a("s_nop 0")
    a("v_readfirstlane_b32 s4, v1")
    a("s_cmp_ge_u32 s2, 384")
    a(f"s_cbranch_scc1 {name}_b")
    a("s_mov_b32 s5, s2")
    task_apre(a, f"{name}_end")
    a.lab(f"{name}_b")
    a("s_sub_u32 s5, s2, 384")
    task_bqkv(a, f"{name}_end")
    a.lab(f"{name}_end")
    import gemm
    if gemm.STAMP:
        a("s_cmp_ge_u32 s2, 480")
        a(f"s_cbranch_scc1 {name}_end2")
        stamp(a, 4)
        a("s_waitcnt vmcnt(0)")
        stamp(a, 5)
        a("s_memrealtime s[78:79]")
        a(f"s_load_dwordx2 s[20:21], s[0:1], {KA['ws']}")
        a("s_waitcnt lgkmcnt(0)")
        a(f"s_mov_b32 s22, {hex(WS_SIZE)}")
        a(f"s_mov_b32 s23, {hex(SRD3)}")
        for i in range(6):
            a(f"v_mov_b32 v{10+i}, s{60+2*i}")
        a("v_mov_b32 v16, s76")
        a("v_mov_b32 v17, s78")
        a("s_lshl_b32 s30, s2, 5")
        a(f"s_add_u32 s30, s30, {WS_FLAG}")
        a("v_mov_b32 v1, 0")
        a("v_cmp_eq_u32 vcc, 0, v0")
        a("s_and_saveexec_b64 s[32:33], vcc")
        a("buffer_store_dwordx4 v[10:13], v1, s[20:23], s30 offen")
        a("buffer_store_dwordx4 v[14:17], v1, s[20:23], s30 offen offset:16")
        a.lab(f"{name}_end2")
    a("s_endpgm")

def k6_kernel(a, name="k6_kernel"):
    kernel_header(a, name)
    a("s_cmp_ge_u32 s2, 32")
    a(f"s_cbranch_scc1 {name}_end")
    a("v_lshrrev_b32 v1, 6, v0")
    a("s_nop 0")
    a("v_readfirstlane_b32 s4, v1")
    a("s_mov_b32 s5, s2")
    task_bout(a, f"{name}_end")
    a.lab(f"{name}_end")
    a("s_endpgm")
```

```python
import sys
from core import *
from build1 import build
import k1, hazard, importlib
import chain
def main(out, mod='chain', stamps=False, fine=False, parity=None, srs=8, sag=3, with_k1=True, kopat=10, tokpos=0, tokv=(14,17), toks=(2,6), notok=False, tokfl='sc1', rzpos=0, pubsleep=0, w23=14, split=True, agrz=2, tokk=(1,4,6,8), vld=1, rzq=(1,5,7,9,11), kopq=13, vldq=19, align=0, pad=0, talign=0, pads=None, kopj=1, kv=9):
    import importlib as _i4
    _i4.import_module(mod).KOPJ = kopj; _i4.import_module(mod).KV = kv
    import importlib as _i3
    _i3.import_module(mod).TALIGN = talign; _i3.import_module(mod).PADS = pads or {}
    import importlib as _i2
    _i2.import_module(mod).LOOPALIGN = align; _i2.import_module(mod).LOOPPAD = pad
    import importlib as _il
    _c = _il.import_module(mod); _c.TOKK = tokk; _c.VLDPOS = vld; _c.RZQ = rzq; _c.KOPQ = kopq; _c.VLDQ = vldq
    chain = importlib.import_module(mod)
    chain.SLEEP_W23 = w23; chain.SPLIT_AG = split; chain.AGRZPOS = agrz
    chain.RZPOS = rzpos; chain.PUBSLEEP = pubsleep
    chain.NOTOK = notok; chain.TOKFL = tokfl
    chain.KOPAT = kopat; chain.TOKPOS = tokpos; chain.TOKV = tokv; chain.TOKS = toks; chain.WAIT_TOKENS = None; chain.WAIT_INIT = None; chain.TLF = None; chain.EXT_PROBE = False; chain.START_FUSED = None
    chain.STAMPS = stamps; chain.STAMP_FINE = fine; chain.PARITY = parity; chain.SLEEP_RS = srs; chain.SLEEP_AG = sag
    ks = []
    if with_k1: ks.append(("k1_kernel", k1.k1_kernel, 480, 256, 163840))
    ks.append(("k2_kernel", chain.k2_kernel, 256, 256, 163840))
    t = build(ks)
    open(out, "w").write(t)
    return t
if __name__ == "__main__":
    t = main("k12.s", stamps=True)
    print(len(t))
    hazard.check(t)
```
